```python
import torch

def _softmax(x, axis=-1):
    return torch.softmax(x, dim=axis)
def _gelu(x):
    return torch.nn.functional.gelu(x, approximate="tanh")
def _silu(x):
    return torch.nn.functional.silu(x)
def _sigmoid(x):
    return torch.sigmoid(x)
def _layernorm(x, axis=-1, eps=1e-5):
    m = x.mean(dim=axis, keepdim=True)
    v = x.var(dim=axis, keepdim=True, unbiased=False)
    return (x - m) / torch.sqrt(v + eps)
def _scatter_add(tgt, idx, src, axis=0):
    return tgt.clone().index_add_(axis, idx, src)
def _segment_sum(src, seg, n):
    out = torch.zeros((n,) + src.shape[1:], dtype=src.dtype)
    return out.index_add_(0, seg, src)
def _pad(x, pw):
    flat = tuple(v for pair in reversed(pw) for v in pair)
    return torch.nn.functional.pad(x, flat)

kernel_name = 'recurrent_scan__sliding_block_cached__mixer_token_mlp__decode'

def setup_inputs():

    _w = (lambda a: (lambda t: t.to(torch.bfloat16) if t.is_floating_point() else t)(torch.as_tensor(a)))
    def _A_setup():
        B, Sq, D = 2, 1, 512
        Hq, Hkv, Sk, Dh = 32, 32, 4096, 128
        assert Hq % Hkv == 0, (Hq, Hkv)
        return {
            "x": _w((lambda *s: torch.randn(*s, dtype=torch.bfloat16) * 0.4)(B, Sq, D)),
            "k_cache": _w((lambda *s: torch.randn(*s, dtype=torch.bfloat16) * 1.6)(B, Hkv, Sk, Dh)),
            "v_cache": _w((lambda *s: torch.randn(*s, dtype=torch.bfloat16) * 1.6)(B, Hkv, Sk, Dh)),
            "wq": _w((lambda *s: torch.randn(*s, dtype=torch.bfloat16) * 1.6)(D, Hq * Dh) * (D ** -0.5)),
            "wo": _w((lambda *s: torch.randn(*s, dtype=torch.bfloat16) * 1.6)(Hq * Dh, D) * ((Hq * Dh) ** -0.5)),
        }
    _A_in = _A_setup()

    def _B_setup():
        B, S, D, F = 2, 1, 512, 1376
        return {
            "x": _w((lambda *s: torch.randn(*s, dtype=torch.bfloat16) * 0.4)(B, S, D)),
            "w1": _w((lambda *s: torch.randn(*s, dtype=torch.bfloat16) * 1.6)(S, F) * (S ** -0.5)),
            "b1": _w((lambda *s: torch.randn(*s, dtype=torch.bfloat16) * 1.6)(F) * 0.02),
            "w2": _w((lambda *s: torch.randn(*s, dtype=torch.bfloat16) * 1.6)(F, S) * (F ** -0.5)),
            "b2": _w((lambda *s: torch.randn(*s, dtype=torch.bfloat16) * 1.6)(S) * 0.02),
        }
    _B_in = _B_setup()

    return {
        "A_x": _A_in["x"],
        "A_k_cache": _A_in["k_cache"],
        "A_v_cache": _A_in["v_cache"],
        "A_wq": _A_in["wq"],
        "A_wo": _A_in["wo"],
        "B_x": _B_in["x"],
        "B_w1": _B_in["w1"],
        "B_b1": _B_in["b1"],
        "B_w2": _B_in["w2"],
        "B_b2": _B_in["b2"],
    }

def reference(A_x, A_k_cache, A_v_cache, A_wq, A_wo, B_x, B_w1, B_b1, B_w2, B_b2):
    def _A_ref(x, k_cache, v_cache, wq, wo):
        B, Sq, D = x.shape
        Hq, Dh = 32, 128
        Hkv, Sk = k_cache.shape[1], k_cache.shape[2]
        W = min(4096, max(256, Sk // 4))
        rep = Hq // Hkv
        q = (lambda x, *d: x.permute(*d))((x @ wq).reshape(B, Sq, Hq, Dh), 0, 2, 1, 3)
        k = (lambda x, n, axis: torch.repeat_interleave(x, n, dim=axis))(k_cache[:, :, Sk - W:, :], rep, axis=1)
        v = (lambda x, n, axis: torch.repeat_interleave(x, n, dim=axis))(v_cache[:, :, Sk - W:, :], rep, axis=1)
        scores = torch.einsum("bhqd,bhkd->bhqk", q, k) * (Dh ** -0.5)
        p = _softmax(scores, axis=-1)
        o = torch.einsum("bhqk,bhkd->bhqd", p, v)
        return (lambda x, *d: x.permute(*d))(o, 0, 2, 1, 3).reshape(B, Sq, Hq * Dh) @ wo

    def _B_ref(x, w1, b1, w2, b2):
        B, S, D = x.shape
        h = _layernorm(x, axis=-1)
        u = torch.einsum("bsd,sf->bdf", h, w1) + b1
        u = _gelu(u)
        y = torch.einsum("bdf,fs->bds", u, w2) + b2
        return (lambda x, *d: x.permute(*d))(y, 0, 2, 1)

    x = A_x
    xn = _layernorm(x, axis=-1)
    s = _A_ref(xn, A_k_cache, A_v_cache, A_wq, A_wo)
    g = _silu(_B_ref(xn, B_w1, B_b1, B_w2, B_b2))
    return x + s * g
```

```python
import re

TRANS = ("v_exp_f32", "v_log_f32", "v_rcp_f32", "v_rsq_f32", "v_sqrt_f32", "v_sin_f32", "v_cos_f32")


def regs(tok):
    tok = tok.strip()
    m = re.fullmatch(r"([vsa])(\d+)", tok)
    if m:
        return {(m.group(1), int(m.group(2)))}
    m = re.fullmatch(r"([vsa])\[(\d+):(\d+)\]", tok)
    if m:
        return {(m.group(1), i) for i in range(int(m.group(2)), int(m.group(3)) + 1)}
    if tok in ("vcc", "vcc_lo", "vcc_hi"):
        return {("s", "vcc")}
    if tok in ("exec", "exec_lo", "exec_hi"):
        return {("s", "exec")}
    if tok == "m0":
        return {("s", "m0")}
    return set()


class Ins:
    def __init__(self, text):
        self.text = text
        t = text.split(";")[0].strip()
        self.label = t[:-1] if t.endswith(":") else None
        self.directive = t.startswith(".") or t == ""
        self.op = ""
        self.wr = set(); self.rd = set(); self.srcC = set(); self.srcAB = set(); self.data = set()
        self.kind = "other"
        if self.label or self.directive:
            return
        parts = t.split(None, 1)
        self.op = op = parts[0]
        rest = parts[1] if len(parts) > 1 else ""
        ops = [o.strip() for o in re.split(r",(?![^\[]*\])", rest)] if rest else []
        mods = ""
        if ops:
            sp = ops[-1].split(None, 1)
            if sp:
                ops[-1] = sp[0]
                mods = sp[1] if len(sp) > 1 else ""
        self.ops = ops; self.mods = mods
        R = [regs(o.lstrip("-").replace("|", "")) for o in ops]
        if op.startswith("v_mfma"):
            self.kind = "mfma"
            self.wr = R[0]; self.srcAB = R[1] | R[2]; self.srcC = R[3]; self.rd = self.srcAB | self.srcC
            self.passes = 8 if "32x32" in op else 4
        elif op.startswith("v_"):
            self.kind = "valu"
            if "permlane" in op and "swap" in op:
                self.wr = R[0] | R[1]; self.rd = R[0] | R[1]
            else:
                self.wr = set(R[0])
                for r in R[1:]:
                    self.rd |= r
                if op.startswith("v_cmpx"):
                    self.wr |= {("s", "exec")}
                if op.startswith(("v_fmac", "v_mac", "v_pk_fmac", "v_dot2c")) or "_dpp" in op or "dpp" in mods or "row_" in mods or "quad_perm" in mods:
                    self.rd |= R[0]
                if op.startswith(("v_add_co", "v_sub_co", "v_addc_co")):
                    self.wr |= R[1]
            self.dpp = ("_dpp" in op) or ("quad_perm" in mods) or ("row_" in mods)
        elif op.startswith("ds_"):
            self.kind = "mem"
            if op.startswith(("ds_read", "ds_bpermute", "ds_permute", "ds_swizzle")) or "_rtn" in op:
                self.wr = R[0]
                for r in R[1:]:
                    self.rd |= r
            else:
                for r in R:
                    self.rd |= r
        elif op.startswith(("buffer_", "global_", "flat_")):
            self.kind = "vmem"
            lds = re.search(r"\blds\b", mods) is not None
            self.lds = lds
            if "load" in op and not lds:
                self.wr = R[0]
                for r in R[1:]:
                    self.rd |= r
            else:
                for r in R:
                    self.rd |= r
                if "store" in op and ("x3" in op or "x4" in op):
                    self.data = R[0] if op.startswith("buffer_") else R[1]
            if lds:
                self.rd |= {("s", "m0")}
        elif op.startswith("s_"):
            self.kind = "salu"
            if op.startswith(("s_cmp", "s_waitcnt", "s_nop", "s_barrier", "s_branch", "s_cbranch", "s_sleep", "s_setprio", "s_endpgm", "s_bitcmp")):
                for r in R:
                    self.rd |= r
            else:
                self.wr = R[0] if R else set()
                for r in R[1:]:
                    self.rd |= r
                if "saveexec" in op:
                    self.wr |= {("s", "exec")}

    def states(self):
        if self.label or self.directive:
            return 0
        if self.op == "s_nop":
            return int(self.ops[0], 0) + 1
        return 1


def need(p, c):
    n = 0
    isv = lambda s: {r for r in s if r[0] in "va"}
    iss = lambda s: {r for r in s if r[0] == "s"}
    if p.kind == "valu":
        vw = isv(p.wr); sw = iss(p.wr)
        if c.kind == "valu":
            if vw & c.rd:
                if c.dpp or "permlane" in c.op:
                    n = max(n, 2)
                if c.op.startswith(("v_readfirstlane", "v_readlane")):
                    n = max(n, 1)
                if p.op.startswith(TRANS) and not c.op.startswith(TRANS):
                    n = max(n, 1)
                if p.op.startswith("v_dot"):
                    n = max(n, 3)
            if p.op.startswith("v_dot") and vw & c.wr and c.op != p.op:
                n = max(n, 3)
            if (sw - {("s", "exec")}) & c.rd:
                n = max(n, 4 if c.op.startswith(("v_readlane", "v_writelane")) else 2)
            if ("s", "exec") in sw:
                if c.dpp:
                    n = max(n, 5)
                if "permlane" in c.op or c.op.startswith(("v_readlane", "v_readfirstlane", "v_writelane")):
                    n = max(n, 4)
                if ("s", "exec") in c.rd:
                    n = max(n, 2)
        if c.kind == "mfma":
            if vw & c.rd:
                n = max(n, 3 if p.op.startswith("v_dot") else 2)
            if ("s", "exec") in sw:
                n = max(n, 4)
        if c.kind == "vmem":
            if (sw - {("s", "exec")}) & c.rd:
                n = max(n, 5)
        if c.kind in ("vmem", "mem") and p.op.startswith("v_dot") and vw & c.rd:
            n = max(n, 3)
    if p.kind == "mfma":
        big = {4: 8, 8: 12}[p.passes]
        if c.kind == "mfma":
            if p.wr & c.srcAB:
                n = max(n, big)
            if p.wr & c.srcC and not (p.wr == c.srcC and p.passes == c.passes):
                n = max(n, big - 2)
            if p.wr & c.wr and not (p.wr & c.srcC):
                n = max(n, big)
        elif c.kind in ("valu", "mem", "vmem"):
            if p.wr & (c.rd | c.wr):
                n = max(n, big)
            if c.kind == "valu" and p.srcC & c.wr:
                n = max(n, {4: 3, 8: 7}[p.passes])
    if p.kind == "salu" and ("s", "m0") in p.wr and c.kind == "vmem" and getattr(c, "lds", False):
        n = max(n, 1)
    if p.kind == "vmem" and p.data:
        if c.kind == "valu" and p.data & c.wr:
            n = max(n, 2)
        elif c.kind in ("mem", "vmem", "mfma") and p.data & c.wr:
            n = max(n, 2 if c.kind == "mfma" else 1)
    return n


MAXD = 12


def pad(lines, verbose=False):
    ins = [Ins(l) for l in lines]
    added = 0
    i = 0
    while i < len(ins):
        c = ins[i]
        if c.label or c.directive or c.kind in ("other", "salu"):
            i += 1
            continue
        labels = {x.label: k for k, x in enumerate(ins) if x.label}
        branches = {}
        for k, x in enumerate(ins):
            if x.op.startswith(("s_branch", "s_cbranch")):
                branches.setdefault(labels[x.ops[0]], []).append(k)
        worst = 0; why = None
        stack = [(i - 1, 0)]
        seen = set()
        while stack:
            k, d = stack.pop()
            if k < 0 or d >= MAXD or (k, d) in seen:
                continue
            seen.add((k, d))
            p = ins[k]
            if p.label:
                for b in branches.get(k, []):
                    stack.append((b, d))
                j = k - 1
                while j >= 0 and (ins[j].directive):
                    j -= 1
                if j >= 0 and ins[j].op not in ("s_branch", "s_endpgm"):
                    stack.append((k - 1, d))
                continue
            if p.directive:
                stack.append((k - 1, d))
                continue
            n = need(p, c)
            if n - d > worst:
                worst = n - d; why = p.text
            stack.append((k - 1, d + p.states()))
        if worst > 0:
            if verbose:
                print(f"pad {worst}: [{why.strip()}] -> [{c.text.strip()}]")
            ins.insert(i, Ins(f"    s_nop {worst-1}"))
            added += 1
            i += 1
        i += 1
    return [x.text for x in ins], added
```

```python
import sys, math, struct
import hazard

NAME = "recurrent_scan__sliding_block_cached__mixer_token_mlp__decode"


def f2u(x):
    return struct.unpack("<I", struct.pack("<f", x))[0]


HEADER = """; Kernarg layout for this problem (104 bytes, ptrs only, base s[0:1]):
"""

L_K = 0
L_V = 65536
L_WQ = 131072
L_WO = 0
L_SCR = 147456
S_PROG = L_SCR + 0
S_QFLAG = L_SCR + 256
S_PCNT = L_SCR + 260
S_K0 = L_SCR + 264
S_ML = L_SCR + 320
S_Q = L_SCR + 512
S_P = L_SCR + 768
S_O = L_SCR + 1280
LDS_BYTES = L_SCR + 4096

W_EPOCH = 0
W_QX = 0x10000
W_OX = 0x50000
W_LSE = 0x90000
W_SX = 0xA0000
W_ST = 0x100000

LOG2E = 1.4426950408889634
SCALE = 128 ** -0.5
C1 = -2.0 * math.sqrt(2.0 / math.pi) * LOG2E
C2 = C1 * 0.044715

POLL_MAX = 200000


class Gen:
    def __init__(self, depth=28, stamps=False, dbg=None, verbose=False):
        self.verbose = verbose
        self.L = []
        self.depth = depth
        self.stamps = stamps
        self.dbg = dbg
        self.nlab = 0

    def A(self, s):
        for line in s.strip("\n").split("\n"):
            self.L.append("    " + line.strip() if not line.strip().endswith(":") else line.strip())

    def lab(self, p):
        self.nlab += 1
        return f"L_{p}_{self.nlab}"

    def srd(self, d, b, n):
        self.A(f"""s_mov_b32 s{d}, s{b}
        s_and_b32 s{d+1}, s{b+1}, 0xffff
        s_mov_b32 s{d+2}, {n}
        s_mov_b32 s{d+3}, 0x20000""")

    def stamp(self, i):
        if self.stamps:
            assert i < 16
            self.A(f"s_memrealtime s[{64+2*i}:{65+2*i}]")

    def stamp_flush(self):
        if self.stamps:
            self.A("s_waitcnt lgkmcnt(0)")
            self.A(f"""s_lshl_b32 s62, s2, 10
            s_lshl_b32 s63, s3, 7
            s_add_u32 s62, s62, s63
            s_add_u32 s62, s62, {W_ST}
            s_mov_b64 exec, 1""")
            for i in range(16):
                self.A(f"""v_mov_b32 v250, s{64+2*i}
                v_mov_b32 v251, s{65+2*i}
                v_mov_b32 v252, {8*i}
                buffer_store_dwordx2 v[250:251], v252, s[36:39], s62 offen
                s_nop 1""")

    def allreduce(self, op, regs, tmps, bits):
        dpp = {1: "quad_perm:[1,0,3,2]", 2: "quad_perm:[2,3,0,1]", 4: "row_ror:4", 8: "row_ror:8"}
        n = len(regs)
        for b in bits:
            if b in dpp:
                for r in regs:
                    self.A(f"{op}_dpp v{r}, v{r}, v{r} {dpp[b]} row_mask:0xf bank_mask:0xf")
            else:
                sw = "v_permlane16_swap_b32" if b == 16 else "v_permlane32_swap_b32"
                for r, t in zip(regs, tmps):
                    self.A(f"v_mov_b32 v{t}, v{r}")
                for r, t in zip(regs, tmps):
                    self.A(f"{sw} v{t}, v{r}")
                for r, t in zip(regs, tmps):
                    self.A(f"{op} v{r}, v{r}, v{t}")

    def spin_lds(self, vaddr, vtmp, stmp, cmp, imm=0):
        l = self.lab("spin")
        d = self.lab("spind")
        self.A(f"""{l}:
        ds_read_b32 v{vtmp}, v{vaddr} offset:{imm}
        s_waitcnt lgkmcnt(0)
        v_readfirstlane_b32 s{stmp}, v{vtmp}
        s_cmp_{cmp[0]} s{stmp}, {cmp[1]}
        s_cbranch_scc1 {d}
        s_sleep 1
        s_branch {l}
        {d}:""")

    def ln_finish(self, mean, var, mr, rs, t):
        self.A(f"""v_cvt_pk_bf16_f32 v{t}, v{mean}, v{var}
        v_lshlrev_b32 v{mr}, 16, v{t}
        v_and_b32 v{rs}, s35, v{t}
        v_add_f32 v{rs}, {hex(f2u(1e-5))}, v{rs}
        v_cvt_pk_bf16_f32 v{t}, v{rs}, v{rs}
        v_lshlrev_b32 v{rs}, 16, v{t}
        v_sqrt_f32 v{rs}, v{rs}
        s_nop 0
        v_cvt_pk_bf16_f32 v{t}, v{rs}, v{rs}
        v_lshlrev_b32 v{rs}, 16, v{t}
        v_rcp_f32 v{rs}, v{rs}
        s_nop 0""")

    def unpack(self, dst, src, n):
        for k in range(n):
            self.A(f"v_lshlrev_b32 v{dst+2*k}, 16, v{src+k}")
            self.A(f"v_and_b32 v{dst+2*k+1}, s35, v{src+k}")

    def stats(self, x, n, tmp, bits, out_mean, out_var, sw0, sw1):
        np_ = n // 2
        self.A(f"v_pk_add_f32 v[{tmp}:{tmp+1}], v[{x}:{x+1}], v[{x+2}:{x+3}]")
        if np_ >= 4:
            self.A(f"v_pk_add_f32 v[{tmp+2}:{tmp+3}], v[{x+4}:{x+5}], v[{x+6}:{x+7}]")
        for k in range(4, np_):
            a = tmp + 2 * (k & 1)
            self.A(f"v_pk_add_f32 v[{a}:{a+1}], v[{a}:{a+1}], v[{x+2*k}:{x+2*k+1}]")
        self.A(f"v_pk_add_f32 v[{tmp}:{tmp+1}], v[{tmp}:{tmp+1}], v[{tmp+2}:{tmp+3}]")
        self.A(f"v_add_f32 v{out_mean}, v{tmp}, v{tmp+1}")
        self.allreduce("v_add_f32", [out_mean], [sw0], bits)
        self.A(f"v_mul_f32 v{out_mean}, {hex(f2u(1.0/512))}, v{out_mean}")
        assert out_mean % 2 == 0
        for k in range(np_):
            self.A(f"v_pk_add_f32 v[{tmp+2*k}:{tmp+2*k+1}], v[{x+2*k}:{x+2*k+1}], v[{out_mean}:{out_mean+1}] op_sel_hi:[1,0] neg_lo:[0,1] neg_hi:[0,1]")
        self.A(f"v_pk_mul_f32 v[{tmp}:{tmp+1}], v[{tmp}:{tmp+1}], v[{tmp}:{tmp+1}]")
        self.A(f"v_pk_mul_f32 v[{tmp+2}:{tmp+3}], v[{tmp+2}:{tmp+3}], v[{tmp+2}:{tmp+3}]")
        for k in range(2, np_):
            a = tmp + 2 * (k & 1)
            self.A(f"v_pk_fma_f32 v[{a}:{a+1}], v[{tmp+2*k}:{tmp+2*k+1}], v[{tmp+2*k}:{tmp+2*k+1}], v[{a}:{a+1}]")
        self.A(f"v_pk_add_f32 v[{tmp}:{tmp+1}], v[{tmp}:{tmp+1}], v[{tmp+2}:{tmp+3}]")
        self.A(f"v_add_f32 v{out_var}, v{tmp}, v{tmp+1}")
        self.allreduce("v_add_f32", [out_var], [sw1], bits)
        self.A(f"v_mul_f32 v{out_var}, {hex(f2u(1.0/512))}, v{out_var}")

    def normalize(self, x, npair, mr, rs, packed):
        assert mr % 2 == 0 and rs % 2 == 0
        for k in range(npair):
            self.A(f"v_pk_add_f32 v[{x+2*k}:{x+2*k+1}], v[{x+2*k}:{x+2*k+1}], v[{mr}:{mr+1}] op_sel_hi:[1,0] neg_lo:[0,1] neg_hi:[0,1]")
        for k in range(npair):
            self.A(f"v_cvt_pk_bf16_f32 v{packed+k}, v{x+2*k}, v{x+2*k+1}")
        self.unpack(x, packed, npair)
        for k in range(npair):
            self.A(f"v_pk_mul_f32 v[{x+2*k}:{x+2*k+1}], v[{x+2*k}:{x+2*k+1}], v[{rs}:{rs+1}] op_sel_hi:[1,0]")
        for k in range(npair):
            self.A(f"v_cvt_pk_bf16_f32 v{packed+k}, v{x+2*k}, v{x+2*k+1}")

    def poll(self, loads, tagregs):
        l = self.lab("poll")
        d = self.lab("polld")
        self.A(f"s_mov_b32 s60, {POLL_MAX}")
        self.A(f"{l}:")
        for s in loads:
            self.A(s)
        self.A("s_waitcnt vmcnt(0)")
        for r in tagregs:
            self.A(f"v_cmpx_eq_u32 vcc, s34, v{r}")
        self.A(f"""s_cmp_eq_u64 exec, -1
        s_mov_b64 exec, -1
        s_cbranch_scc1 {d}
        s_sub_u32 s60, s60, 1
        s_cmp_lg_u32 s60, 0
        s_cbranch_scc1 {l}
        {d}:""")

    def tag(self):
        self.A("""s_mul_i32 s34, s34, 1664525
        s_add_u32 s34, s34, 1013904223""")

    def build(self):
        A = self.A
        D = self.depth
        self.L.append(HEADER.rstrip("\n"))
        self.L.append(f"; @launch grid=(256,1,1) block=(512,1,1) lds={LDS_BYTES}")
        self.L.append('.amdgcn_target "amdgcn-amd-amdhsa--gfx950"')
        self.L.append(".text")
        self.L.append(f".globl {NAME}_kernel")
        self.L.append(".p2align 8")
        self.L.append(f".type {NAME}_kernel,@function")
        self.L.append(f"{NAME}_kernel:")
        if self.stamps:
            for i in range(16):
                A(f"s_mov_b64 s[{64+2*i}:{65+2*i}], 0")
        self.stamp(0)
        A("""s_cmp_ge_u32 s2, 256
        s_cbranch_scc1 L_end
        s_load_dwordx16 s[4:19], s[0:1], 0
        s_load_dwordx8 s[20:27], s[0:1], 64
        s_load_dwordx2 s[28:29], s[0:1], 96
        v_lshrrev_b32 v1, 6, v0
        v_and_b32 v0, 63, v0
        v_readfirstlane_b32 s3, v1
        s_and_b32 s30, s2, 7
        s_lshl_b32 s30, s30, 2
        s_lshr_b32 s31, s2, 3
        s_lshr_b32 s32, s31, 3
        s_add_u32 s30, s30, s32
        s_and_b32 s31, s31, 7
        s_lshr_b32 s32, s31, 2
        s_and_b32 s33, s31, 3
        s_mov_b32 s35, 0xffff0000
        v_lshrrev_b32 v1, 4, v0
        v_and_b32 v2, 15, v0
        v_lshlrev_b32 v3, 4, v0
        s_cmp_eq_u32 s3, 6
        s_cbranch_scc1 L_loader
        s_cmp_eq_u32 s3, 4
        s_cbranch_scc1 L_qwave
        s_cmp_eq_u32 s3, 5
        s_cbranch_scc1 L_gwave
        s_cmp_eq_u32 s3, 7
        s_cbranch_scc1 L_swave""")

        A("s_setprio 2")
        A(f"""v_xor_b32 v8, v1, v2
        v_lshlrev_b32 v8, 4, v8
        v_lshl_add_u32 v8, v2, 8, v8
        s_lshl_b32 s40, s3, 14
        v_add_u32 v8, s40, v8
        v_xor_b32 v9, 64, v8
        v_xor_b32 v10, 0x80, v8
        v_xor_b32 v11, 0xc0, v8
        v_cmp_eq_u32 s[42:43], 1, v1
        v_cmp_eq_u32 s[44:45], 2, v1
        v_cmp_eq_u32 s[46:47], 3, v1
        v_mov_b32 v12, {L_SCR}
        v_lshlrev_b32 v13, 4, v1
        v_add_u32 v13, {S_Q}, v13
        s_add_u32 s41, s3, 1
        s_lshl_b32 s41, s41, 2
        s_waitcnt lgkmcnt(0)
        s_load_dword s34, s[28:29], {W_EPOCH}""")
        self.srd(36, 28, 0x10000000)
        A("s_barrier")
        self.spin_lds(12, 14, 40, ("ge_i32", "s41"))
        self.stamp(1)
        for T in range(4):
            for ks in range(4):
                r = 32 + 16 * T + 4 * ks
                A(f"ds_read_b128 v[{r}:{r+3}], v{8+ks} offset:{T*4096}")
        self.tag()
        A(f"""s_waitcnt lgkmcnt(0)
        s_cmp_lg_u32 s3, 0
        s_cbranch_scc1 L_k_nok0
        s_mov_b64 exec, 1
        v_mov_b32 v14, 1
        ds_write_b32 v12, v14 offset:{S_K0-L_SCR}
        s_mov_b64 exec, -1
        L_k_nok0:""")
        self.spin_lds(12, 14, 40, ("lg_u32", "0"), imm=S_QFLAG - L_SCR)
        self.stamp(2)
        for ks in range(4):
            A(f"ds_read_b128 v[{96+4*ks}:{99+4*ks}], v13 offset:{ks*64}")
        for ks in range(4):
            A(f"s_waitcnt lgkmcnt({3-ks})")
            for T in range(4):
                kf = 32 + 16 * T + 4 * ks
                c = 112 + 4 * T
                src = "0" if ks == 0 else f"v[{c}:{c+3}]"
                A(f"v_mfma_f32_16x16x32_bf16 v[{c}:{c+3}], v[{96+4*ks}:{99+4*ks}], v[{kf}:{kf+3}], {src}")
        A(f"""v_lshlrev_b32 v15, 1, v0
        s_lshl_b32 s40, s3, 7
        s_add_u32 s40, s40, {S_P}
        v_add_u32 v15, s40, v15
        s_lshl_b32 s40, s3, 3
        s_add_u32 s40, s40, {S_ML}
        v_mov_b32 v20, s40
        s_nop 0
        v_cndmask_b32 v16, v112, v116, s[42:43]
        v_cndmask_b32 v16, v16, v120, s[44:45]
        v_cndmask_b32 v16, v16, v124, s[46:47]
        v_cvt_pk_bf16_f32 v16, v16, v16
        v_lshlrev_b32 v16, 16, v16
        v_mul_f32 v16, {hex(f2u(SCALE))}, v16
        v_cvt_pk_bf16_f32 v16, v16, v16
        v_lshlrev_b32 v16, 16, v16
        v_mul_f32 v16, {hex(f2u(LOG2E))}, v16
        v_mov_b32 v18, v16""")
        self.allreduce("v_max_f32", [18], [17], [1, 2, 4, 8, 16, 32])
        A(f"""v_sub_f32 v16, v16, v18
        v_exp_f32 v19, v16
        s_nop 0
        v_cvt_pk_bf16_f32 v16, v19, v19
        ds_write_b16 v15, v16""")
        self.allreduce("v_add_f32", [19], [17], [1, 2, 4, 8, 16, 32])
        A(f"""s_mov_b64 exec, 1
        ds_write_b64 v20, v[18:19]
        v_mov_b32 v14, 1
        s_waitcnt lgkmcnt(0)
        ds_add_u32 v12, v14 offset:{S_PCNT-L_SCR}
        s_mov_b64 exec, -1""")
        self.stamp(3)
        A("s_branch L_common")

        A("L_loader:")
        A(f"""v_xor_b32 v8, v1, v2
        v_lshlrev_b32 v8, 4, v8
        v_lshl_add_u32 v8, v1, 8, v8
        v_xor_b32 v9, 64, v8
        v_xor_b32 v10, 0x80, v8
        v_xor_b32 v11, 0xc0, v8
        v_lshlrev_b32 v12, 1, v1
        v_xor_b32 v12, v12, v2
        v_lshlrev_b32 v12, 4, v12
        v_lshl_add_u32 v12, v1, 8, v12
        v_xor_b32 v13, 0x80, v12
        v_and_b32 v14, 1, v1
        v_lshlrev_b32 v14, 1, v14
        v_and_b32 v15, 7, v0
        v_xor_b32 v14, v14, v15
        v_lshlrev_b32 v14, 4, v14
        v_lshrrev_b32 v15, 3, v0
        v_lshl_add_u32 v14, v15, 10, v14
        v_xor_b32 v15, 64, v14
        v_lshlrev_b32 v16, 2, v0
        v_add_u32 v16, {S_PROG}, v16
        v_mov_b32 v17, {-(D//4)}
        s_lshl_b32 s52, s32, 5
        s_add_u32 s52, s52, s30
        s_lshl_b32 s52, s52, 20
        s_lshl_b32 s53, s33, 16
        s_add_u32 s52, s52, s53
        s_add_u32 s52, s52, 0xC0000
        s_lshl_b32 s55, s30, 17
        s_lshl_b32 s53, s31, 7
        s_add_u32 s55, s55, s53
        s_waitcnt lgkmcnt(0)
        s_load_dword s34, s[28:29], {W_EPOCH}""")
        self.srd(40, 6, 0x4000000)
        self.srd(44, 8, 0x4000000)
        self.srd(48, 12, 0x400000)
        self.srd(36, 28, 0x10000000)
        A(f"""s_mov_b32 s53, s52
        s_mov_b32 s54, {L_K}
        s_barrier""")
        self.stamp(1)
        A(f"""L_ld_k:
        s_mov_b32 m0, s54
        s_add_u32 s54, s54, 4096
        buffer_load_dwordx4 v8, s[40:43], s53 offen nt lds
        buffer_load_dwordx4 v9, s[40:43], s53 offen offset:1024 nt lds
        buffer_load_dwordx4 v10, s[40:43], s53 offen offset:2048 nt lds
        buffer_load_dwordx4 v11, s[40:43], s53 offen offset:3072 nt lds
        s_add_u32 s53, s53, 4096
        v_add_u32 v17, 1, v17
        s_waitcnt vmcnt({D})
        ds_write_b32 v16, v17
        s_cmp_lt_u32 s54, {L_V}
        s_cbranch_scc1 L_ld_k
        s_mov_b32 s53, s52""")
        self.stamp(2)
        A(f"""L_ld_v:
        s_mov_b32 m0, s54
        s_add_u32 s54, s54, 4096
        buffer_load_dwordx4 v12, s[44:47], s53 offen nt lds
        buffer_load_dwordx4 v12, s[44:47], s53 offen offset:1024 nt lds
        buffer_load_dwordx4 v13, s[44:47], s53 offen offset:2048 nt lds
        buffer_load_dwordx4 v13, s[44:47], s53 offen offset:3072 nt lds
        s_add_u32 s53, s53, 4096
        v_add_u32 v17, 1, v17
        s_waitcnt vmcnt({D})
        ds_write_b32 v16, v17
        s_cmp_lt_u32 s54, {L_V+65536}
        s_cbranch_scc1 L_ld_v
        v_mov_b32 v12, {L_SCR}""")
        self.stamp(3)
        self.spin_lds(12, 8, 53, ("lg_u32", "0"), imm=S_K0 - L_SCR)
        self.tag()
        A(f"""s_mov_b32 s54, {L_WO}
        L_ld_o:
        s_mov_b32 m0, s54
        s_add_u32 s54, s54, 4096
        buffer_load_dwordx4 v14, s[48:51], s55 offen nt lds
        s_add_u32 s55, s55, {8192-1024}
        buffer_load_dwordx4 v15, s[48:51], s55 offen offset:1024 nt lds
        s_add_u32 s55, s55, {8192-1024}
        buffer_load_dwordx4 v14, s[48:51], s55 offen offset:2048 nt lds
        s_add_u32 s55, s55, {8192-1024}
        buffer_load_dwordx4 v15, s[48:51], s55 offen offset:3072 nt lds
        s_add_u32 s55, s55, {8192+3072}
        s_waitcnt vmcnt({D})
        s_cmp_lt_u32 s54, {L_WO+16384}
        s_cbranch_scc1 L_ld_o""")
        self.stamp(4)
        A("s_branch L_common")

        A("L_qwave:")
        A("s_setprio 3")
        A(f"""v_bfe_u32 v8, v0, 2, 1
        v_lshlrev_b32 v8, 10, v8
        v_and_b32 v9, 3, v0
        v_lshrrev_b32 v10, 3, v0
        v_lshl_add_u32 v11, v10, 2, v9
        v_lshl_add_u32 v40, v11, 5, v8
        v_lshl_add_u32 v41, v9, 6, v8
        v_lshl_add_u32 v41, v1, 4, v41
        s_lshl_b32 s52, s33, 8
        v_and_b32 v8, 1, v1
        v_lshlrev_b32 v8, 1, v8
        v_and_b32 v11, 7, v0
        v_xor_b32 v8, v8, v11
        v_lshlrev_b32 v8, 4, v8
        v_lshl_add_u32 v42, v10, 13, v8
        v_xor_b32 v43, 64, v42
        s_lshl_b32 s53, s33, 20
        s_lshl_b32 s54, s30, 8
        s_add_u32 s53, s53, s54
        s_lshl_b32 s54, s32, 7
        s_add_u32 s53, s53, s54
        s_mov_b32 s54, {L_WQ}
        s_waitcnt lgkmcnt(0)
        s_load_dword s34, s[28:29], {W_EPOCH}""")
        self.srd(40, 4, 2048)
        self.srd(44, 10, 0x400000)
        A("""buffer_load_dwordx4 v[8:11], v40, s[40:43], 0 offen
        buffer_load_dwordx4 v[12:15], v40, s[40:43], 0 offen offset:16
        buffer_load_dwordx4 v[16:19], v41, s[40:43], s52 offen""")
        A(f"""L_ld_q:
        s_mov_b32 m0, s54
        s_add_u32 s54, s54, 4096
        buffer_load_dwordx4 v42, s[44:47], s53 offen nt lds
        s_add_u32 s53, s53, {65536-1024}
        buffer_load_dwordx4 v43, s[44:47], s53 offen offset:1024 nt lds
        s_add_u32 s53, s53, {65536-1024}
        buffer_load_dwordx4 v42, s[44:47], s53 offen offset:2048 nt lds
        s_add_u32 s53, s53, {65536-1024}
        buffer_load_dwordx4 v43, s[44:47], s53 offen offset:3072 nt lds
        s_add_u32 s53, s53, {65536+3072}
        s_cmp_lt_u32 s54, {L_WQ+16384}
        s_cbranch_scc1 L_ld_q
        s_barrier""")
        self.stamp(1)
        self.srd(36, 28, 0x10000000)
        A(f"""v_lshrrev_b32 v44, 2, v2
        v_lshrrev_b32 v45, 1, v44
        v_and_b32 v46, 1, v1
        v_lshl_add_u32 v45, v46, 1, v45
        v_lshl_add_u32 v44, v1, 3, v44
        v_lshlrev_b32 v44, 7, v44
        v_lshl_add_u32 v44, v45, 5, v44
        v_and_b32 v45, 3, v0
        v_lshl_add_u32 v44, v45, 3, v44
        v_add_u32 v44, {L_WQ}, v44
        v_xor_b32 v45, 32, v44
        v_xor_b32 v46, 64, v44
        v_xor_b32 v47, 0x60, v44
        s_waitcnt vmcnt(17)""")
        self.unpack(20, 8, 8)
        self.stats(20, 16, 180, [1, 2, 8, 16, 32], 36, 38, 37, 37)
        self.ln_finish(36, 38, 40, 42, 37)
        A("s_waitcnt vmcnt(16)")
        self.unpack(20, 16, 4)
        self.normalize(20, 4, 40, 42, 16)
        A("s_waitcnt lgkmcnt(0)")
        self.tag()
        self.stamp(2)
        for ks in range(4):
            A(f"s_waitcnt vmcnt({12-4*ks})")
            for t in range(4):
                b = 48 + 16 * ks + 4 * t
                A(f"ds_read_b64_tr_b16 v[{b}:{b+1}], v{44+t} offset:{ks*4096}")
                A(f"ds_read_b64_tr_b16 v[{b+2}:{b+3}], v{44+t} offset:{ks*4096+512}")
            for t in range(4):
                b = 48 + 16 * ks + 4 * t
                c = 112 + 16 * ks + 4 * t
                A(f"s_waitcnt lgkmcnt({6-2*t})")
                A(f"v_mfma_f32_16x16x32_bf16 v[{c}:{c+3}], v[16:19], v[{b}:{b+3}], 0")
        self.stamp(3)
        A(f"""v_mov_b32 v181, s34
        v_mov_b32 v183, s34
        v_mov_b32 v185, s34
        v_mov_b32 v187, s34
        v_lshlrev_b32 v188, 12, v1
        v_lshl_add_u32 v188, v2, 4, v188
        s_lshl_b32 s52, s30, 13
        s_lshl_b32 s53, s33, 10
        s_add_u32 s53, s53, s52
        s_lshl_b32 s54, s32, 9
        s_add_u32 s53, s53, s54
        s_add_u32 s53, s53, {W_QX}
        s_lshl_b32 s54, s32, 12
        s_add_u32 s52, s52, s54
        s_add_u32 s52, s52, {W_QX}""")
        for t in range(4):
            o = 180 + 2 * t
            A(f"v_add_f32 v{o}, v{112+4*t}, v{128+4*t+1}")
            A(f"v_add_f32 v{o}, v{o}, v{144+4*t+2}")
        for t in range(4):
            o = 180 + 2 * t
            A(f"v_add_f32 v{o}, v{o}, v{160+4*t+3}")
        A(f"""s_mov_b32 exec_hi, 0
        buffer_store_dwordx4 v[180:183], v188, s[36:39], s53 offen sc1
        buffer_store_dwordx4 v[184:187], v188, s[36:39], s53 offen offset:256 sc1
        s_mov_b32 exec_hi, -1
        v_lshlrev_b32 v24, 6, v1
        v_lshl_add_u32 v24, v2, 1, v24
        v_add_u32 v24, {S_Q}, v24
        v_mov_b32 v12, {L_SCR}
        v_mov_b32 v25, 1""")
        self.stamp(4)
        self.poll([f"buffer_load_dwordx4 v[{48+4*k}:{51+4*k}], v3, s[36:39], s52 offen offset:{k*1024} sc1" for k in range(4)],
                  [49, 51, 53, 55, 57, 59, 61, 63])
        A(f"""v_add_f32 v48, v48, v52
        v_add_f32 v50, v50, v54
        v_add_f32 v56, v56, v60
        v_add_f32 v58, v58, v62
        v_add_f32 v48, v48, v56
        v_add_f32 v50, v50, v58
        v_cvt_pk_bf16_f32 v48, v48, v50
        ds_write_b16 v24, v48
        ds_write_b16_d16_hi v24, v48 offset:32
        s_waitcnt lgkmcnt(0)
        s_mov_b64 exec, 1
        ds_write_b32 v12, v25 offset:{S_QFLAG-L_SCR}
        s_mov_b64 exec, -1""")
        self.stamp(5)
        A("s_branch L_common")

        A("L_gwave:")
        A("s_setprio 1")
        A(f"""s_and_b32 s52, s2, 127
        s_lshr_b32 s53, s2, 7
        s_lshl_b32 s53, s53, 10
        v_lshl_add_u32 v40, v0, 1, s52
        v_add_u32 v41, 1, v40
        v_and_b32 v40, 127, v40
        v_and_b32 v41, 127, v41
        v_lshlrev_b32 v40, 3, v40
        v_lshlrev_b32 v41, 3, v41
        v_mov_b32 v42, 0
        s_waitcnt lgkmcnt(0)
        s_load_dword s34, s[28:29], {W_EPOCH}""")
        self.srd(40, 4, 2048)
        self.srd(44, 16, 2752)
        self.srd(48, 18, 2752)
        A("""buffer_load_dwordx2 v[8:9], v40, s[40:43], s53 offen
        buffer_load_dwordx2 v[10:11], v41, s[40:43], s53 offen""")
        for k in range(3):
            A(f"buffer_load_dwordx4 v[{12+4*k}:{15+4*k}], v3, s[44:47], 0 offen offset:{1024*k}")
        for k in range(3):
            A(f"buffer_load_dwordx4 v[{24+4*k}:{27+4*k}], v3, s[48:51], 0 offen offset:{1024*k}")
        self.srd(44, 20, 2752)
        self.srd(48, 22, 2)
        for k in range(3):
            A(f"buffer_load_dwordx4 v[{204+4*k}:{207+4*k}], v3, s[44:47], 0 offen offset:{1024*k}")
        A("buffer_load_ushort v48, v42, s[48:51], 0 offen")
        A("s_barrier")
        self.stamp(1)
        self.srd(36, 28, 0x10000000)
        A(f"""s_mov_b32 s44, {hex(f2u(C2))}
        s_mov_b32 s45, {hex(f2u(C2))}
        s_mov_b32 s46, 1.0
        s_mov_b32 s47, 1.0
        v_mov_b32 v138, {hex(f2u(C1))}
        v_mov_b32 v139, {hex(f2u(C1))}
        v_and_b32 v49, 1, v0
        v_cmp_eq_u32 s[48:49], 1, v49
        s_waitcnt vmcnt(10)""")
        self.unpack(50, 8, 4)
        A("""v_readfirstlane_b32 s56, v50
        v_readfirstlane_b32 s57, v51
        v_readfirstlane_b32 s58, v52
        v_readfirstlane_b32 s59, v53""")
        self.stats(50, 8, 58, [1, 2, 4, 8, 16, 32], 36, 38, 37, 37)
        A("""v_mov_b32 v4, s56
        v_mov_b32 v5, s57
        v_mov_b32 v6, s58
        v_mov_b32 v7, s59
        v_cndmask_b32 v4, v4, v6, s[48:49]
        v_cndmask_b32 v5, v5, v7, s[48:49]""")
        self.ln_finish(36, 38, 40, 42, 37)
        self.normalize(50, 4, 40, 42, 8)
        self.unpack(50, 8, 4)
        self.stats(50, 8, 58, [1, 2, 4, 8, 16, 32], 36, 38, 37, 37)
        self.ln_finish(36, 38, 40, 42, 37)
        self.normalize(50, 2, 40, 42, 8)
        self.unpack(50, 8, 2)
        A("""s_nop 0
        v_readfirstlane_b32 s56, v50
        v_readfirstlane_b32 s57, v51
        v_readfirstlane_b32 s58, v52
        v_readfirstlane_b32 s59, v53
        s_waitcnt vmcnt(0)""")
        self.stamp(2)
        self.unpack(64, 12, 12)
        self.unpack(88, 24, 12)
        self.unpack(112, 204, 12)
        for i in range(4):
            A(f"v_mov_b32 v{156+2*i}, 0")
            A(f"v_mov_b32 v{157+2*i}, 0")
        for k in range(12):
            w1, b1, w2 = 64 + 2 * k, 88 + 2 * k, 112 + 2 * k
            for i in range(4):
                U = 140 + 2 * i
                hp = 56 + (i & 2)
                sel = i & 1
                A(f"v_pk_fma_f32 v[{U}:{U+1}], v[{w1}:{w1+1}], s[{hp}:{hp+1}], v[{b1}:{b1+1}] op_sel:[0,{sel},0] op_sel_hi:[1,{sel},1]")
            for i in range(4):
                U, T = 140 + 2 * i, 148 + 2 * i
                A(f"v_pk_mul_f32 v[{T}:{T+1}], v[{U}:{U+1}], v[{U}:{U+1}]")
            for i in range(4):
                T = 148 + 2 * i
                A(f"v_pk_fma_f32 v[{T}:{T+1}], v[{T}:{T+1}], s[44:45], v[138:139]")
            for i in range(4):
                U, T = 140 + 2 * i, 148 + 2 * i
                A(f"v_pk_mul_f32 v[{T}:{T+1}], v[{T}:{T+1}], v[{U}:{U+1}]")
            for i in range(8):
                A(f"v_exp_f32 v{148+i}, v{148+i}")
            for i in range(4):
                T = 148 + 2 * i
                A(f"v_pk_add_f32 v[{T}:{T+1}], v[{T}:{T+1}], s[46:47]")
            for i in range(8):
                A(f"v_rcp_f32 v{148+i}, v{148+i}")
            for i in range(4):
                U = 140 + 2 * i
                A(f"v_pk_mul_f32 v[{U}:{U+1}], v[{U}:{U+1}], v[{w2}:{w2+1}]")
            for i in range(4):
                U, T, C = 140 + 2 * i, 148 + 2 * i, 156 + 2 * i
                A(f"v_pk_fma_f32 v[{C}:{C+1}], v[{U}:{U+1}], v[{T}:{T+1}], v[{C}:{C+1}]")
        for i in range(4):
            A(f"v_add_f32 v{140+i}, v{156+2*i}, v{157+2*i}")
        self.allreduce("v_add_f32", [140, 141, 142, 143], [144, 145, 146, 147], [1, 2, 4, 8, 16, 32])
        A(f"""v_cndmask_b32 v6, v140, v142, s[48:49]
        v_cndmask_b32 v7, v141, v143, s[48:49]
        v_lshlrev_b32 v48, 16, v48
        v_cvt_pk_bf16_f32 v8, v6, v7
        v_lshlrev_b32 v6, 16, v8
        v_and_b32 v7, s35, v8
        v_add_f32 v6, v6, v48
        v_add_f32 v7, v7, v48
        v_cvt_pk_bf16_f32 v8, v6, v7
        v_lshlrev_b32 v6, 16, v8
        v_and_b32 v7, s35, v8
        v_mul_f32 v8, {hex(f2u(-LOG2E))}, v6
        v_mul_f32 v9, {hex(f2u(-LOG2E))}, v7
        v_exp_f32 v8, v8
        v_exp_f32 v9, v9
        s_nop 0
        v_add_f32 v8, 1.0, v8
        v_add_f32 v9, 1.0, v9
        v_rcp_f32 v8, v8
        v_rcp_f32 v9, v9
        s_nop 0
        v_mul_f32 v6, v6, v8
        v_mul_f32 v7, v7, v9
        v_cvt_pk_bf16_f32 v8, v6, v7
        v_lshlrev_b32 v6, 16, v8
        v_and_b32 v7, s35, v8
        v_mov_b32 v12, {L_SCR}
        s_waitcnt lgkmcnt(0)""")
        self.tag()
        self.stamp(3)
        A("s_branch L_common")

        A("L_swave:")
        A(f"""v_lshlrev_b32 v8, 2, v0
        v_add_u32 v8, {L_SCR}, v8
        v_mov_b32 v9, 0x80000000
        v_mov_b32 v10, 0
        v_mov_b32 v12, {L_SCR}
        ds_write_b32 v8, v9
        ds_write_b32 v8, v10 offset:256
        s_waitcnt lgkmcnt(0)
        s_load_dword s34, s[28:29], {W_EPOCH}""")
        self.srd(36, 28, 0x10000000)
        A("s_barrier")
        A("s_waitcnt lgkmcnt(0)")
        self.tag()

        A("L_common:")
        A(f"""v_lshrrev_b32 v20, 2, v2
        v_and_b32 v21, 1, v1
        v_lshl_add_u32 v22, v21, 2, v20
        v_xor_b32 v22, s3, v22
        v_lshl_add_u32 v23, v1, 3, v20
        v_lshlrev_b32 v24, 8, v23
        v_lshl_add_u32 v24, v22, 5, v24
        v_and_b32 v25, 3, v0
        v_lshl_add_u32 v24, v25, 3, v24
        v_add_u32 v24, {L_V}, v24
        v_lshrrev_b32 v22, 1, v20
        v_lshl_add_u32 v22, v21, 1, v22
        v_xor_b32 v22, s3, v22
        v_and_b32 v22, 3, v22
        v_lshlrev_b32 v26, 7, v23
        v_lshl_add_u32 v26, v22, 5, v26
        v_lshl_add_u32 v26, v25, 3, v26
        v_lshlrev_b32 v27, 4, v1
        v_add_u32 v28, {S_P}, v27
        v_and_b32 v29, 7, v0
        v_mul_u32_u24 v29, 288, v29
        v_add_u32 v29, v29, v27
        v_add_u32 v29, {S_O}, v29
        s_mul_i32 s52, s3, 288
        s_add_u32 s52, s52, {S_O}
        v_lshlrev_b32 v30, 2, v0
        v_add_u32 v30, s52, v30
        v_lshlrev_b32 v31, 3, v0
        v_lshlrev_b32 v19, 5, v21
        s_lshl_b32 s52, s30, 13
        s_add_u32 s52, s52, {W_OX}
        s_lshl_b32 s53, s31, 10
        s_add_u32 s53, s53, s52
        s_lshl_b32 s54, s3, 7
        s_add_u32 s53, s53, s54
        s_lshl_b32 s54, s3, 10
        s_add_u32 s52, s52, s54
        s_lshl_b32 s54, s30, 7
        s_add_u32 s54, s54, {W_LSE}""")
        self.spin_lds(12, 14, 55, ("ge_u32", "4"), imm=S_PCNT - L_SCR)
        self.stamp(6)
        A(f"""ds_read_b128 v[160:163], v12 offset:{S_ML-L_SCR}
        ds_read_b128 v[164:167], v12 offset:{S_ML-L_SCR+16}""")
        for ks in range(8):
            A(f"ds_read_b128 v[{128+4*ks}:{131+4*ks}], v28 offset:{ks*64}")
        A(f"""s_waitcnt lgkmcnt(8)
        v_max3_f32 v14, v160, v162, v164
        v_max_f32 v14, v14, v166
        v_sub_f32 v160, v160, v14
        v_sub_f32 v162, v162, v14
        v_sub_f32 v164, v164, v14
        v_sub_f32 v166, v166, v14
        v_exp_f32 v160, v160
        v_exp_f32 v162, v162
        v_exp_f32 v164, v164
        v_exp_f32 v166, v166
        v_mul_f32 v15, v160, v161
        v_fmac_f32 v15, v162, v163
        v_fmac_f32 v15, v164, v165
        v_fmac_f32 v15, v166, v167
        v_rcp_f32 v16, v15
        v_log_f32 v15, v15
        v_mov_b32 v17, s34
        v_mul_f32 v160, v160, v16
        v_mul_f32 v162, v162, v16
        v_mul_f32 v164, v164, v16
        v_mul_f32 v166, v166, v16
        v_add_f32 v16, v14, v15
        s_cmp_lg_u32 s3, 7
        s_cbranch_scc1 L_nolse
        s_lshl_b32 s55, s31, 3
        s_add_u32 s55, s55, s54
        v_mov_b32 v18, 0
        s_mov_b64 exec, 1
        buffer_store_dwordx2 v[16:17], v18, s[36:39], s55 offen sc1
        s_mov_b64 exec, -1
        L_nolse:
        s_waitcnt vmcnt(16) lgkmcnt(0)""")
        self.stamp(7)
        A("s_barrier")
        self.stamp(8)
        for ks in range(8):
            b = 168 + 4 * ks
            A(f"ds_read_b64_tr_b16 v[{b}:{b+1}], v24 offset:{ks*8192}")
            A(f"ds_read_b64_tr_b16 v[{b+2}:{b+3}], v24 offset:{ks*8192+1024}")
        for ks in range(8):
            b = 168 + 4 * ks
            c = 200 + 4 * (ks >> 1)
            src = "0" if ks % 2 == 0 else f"v[{c}:{c+3}]"
            A(f"s_waitcnt lgkmcnt({14-2*ks})")
            A(f"v_mfma_f32_16x16x32_bf16 v[{c}:{c+3}], v[{128+4*ks}:{131+4*ks}], v[{b}:{b+3}], {src}")
        A(f"""v_mul_f32 v16, v160, v200
        s_nop 1
        v_fmac_f32 v16, v162, v204
        s_nop 0
        v_fmac_f32 v16, v164, v208
        s_nop 1
        v_fmac_f32 v16, v166, v212
        s_mov_b64 exec, 0xffff
        buffer_store_dwordx2 v[16:17], v31, s[36:39], s53 offen sc1
        s_mov_b64 exec, -1""")
        self.stamp(9)
        self.poll(["buffer_load_dwordx4 v[32:35], v3, s[36:39], s52 offen sc1",
                   "buffer_load_dwordx4 v[36:39], v19, s[36:39], s54 offen sc1",
                   "buffer_load_dwordx4 v[40:43], v19, s[36:39], s54 offen offset:16 sc1"],
                  [33, 35, 37, 39, 41, 43])
        self.stamp(10)
        A(f"""v_cvt_pk_bf16_f32 v32, v32, v34
        ds_write_b32 v30, v32
        s_waitcnt lgkmcnt(0)
        s_barrier""")
        self.stamp(11)
        A("""s_cmp_eq_u32 s3, 5
        s_cbranch_scc1 L_final
        s_cmp_ge_u32 s3, 4
        s_cbranch_scc1 L_fin""")
        for ks in range(4):
            A(f"ds_read_b128 v[{48+4*ks}:{51+4*ks}], v29 offset:{ks*64}")
            b = 64 + 4 * ks
            A(f"ds_read_b64_tr_b16 v[{b}:{b+1}], v26 offset:{L_WO+ks*4096}")
            A(f"ds_read_b64_tr_b16 v[{b+2}:{b+3}], v26 offset:{L_WO+ks*4096+512}")
        A(f"""v_max3_f32 v14, v36, v38, v40
        v_max_f32 v14, v14, v42
        v_sub_f32 v36, v36, v14
        v_sub_f32 v38, v38, v14
        v_sub_f32 v40, v40, v14
        v_sub_f32 v42, v42, v14
        v_exp_f32 v36, v36
        v_exp_f32 v38, v38
        v_exp_f32 v40, v40
        v_exp_f32 v42, v42""")
        for ks in range(4):
            b = 64 + 4 * ks
            src = "0" if ks == 0 else "v[80:83]"
            A(f"s_waitcnt lgkmcnt({9-3*ks})")
            A(f"v_mfma_f32_16x16x32_bf16 v[80:83], v[{48+4*ks}:{51+4*ks}], v[{b}:{b+3}], {src}")
        A(f"""v_add_f32 v15, v36, v38
        v_add_f32 v14, v40, v42
        v_add_f32 v15, v15, v14
        v_rcp_f32 v15, v15
        v_lshlrev_b32 v18, 12, v1
        v_lshl_add_u32 v18, v2, 3, v18
        s_lshl_b32 s52, s30, 13
        s_lshl_b32 s53, s31, 9
        s_add_u32 s52, s52, s53
        s_lshl_b32 s53, s3, 7
        s_add_u32 s52, s52, s53
        s_add_u32 s52, s52, {W_SX}
        v_mul_f32 v16, v36, v80
        v_fmac_f32 v16, v38, v81
        v_fmac_f32 v16, v40, v82
        v_fmac_f32 v16, v42, v83
        v_mul_f32 v16, v16, v15
        s_mov_b32 exec_hi, 0
        buffer_store_dwordx2 v[16:17], v18, s[36:39], s52 offen sc1""")
        self.stamp(12)
        A("s_branch L_fin")

        A("L_final:")
        self.srd(40, 24, 2048)
        A(f"""v_lshrrev_b32 v18, 1, v0
        v_lshlrev_b32 v18, 13, v18
        v_and_b32 v14, 1, v0
        v_lshl_add_u32 v18, v14, 4, v18
        s_lshl_b32 s52, s2, 5
        s_add_u32 s52, s52, {W_SX}
        s_lshl_b32 s53, s2, 3
        v_lshlrev_b32 v15, 2, v0""")
        self.poll(["buffer_load_dwordx4 v[32:35], v18, s[36:39], s52 offen sc1"], [33, 35])
        self.stamp(12)
        self.allreduce("v_add_f32", [32, 34], [33, 35], [2, 4, 8, 16, 32])
        A(f"""v_cvt_pk_bf16_f32 v8, v32, v34
        v_lshlrev_b32 v32, 16, v8
        v_and_b32 v34, s35, v8
        v_mul_f32 v32, v32, v6
        v_mul_f32 v34, v34, v7
        v_cvt_pk_bf16_f32 v8, v32, v34
        v_lshlrev_b32 v32, 16, v8
        v_and_b32 v34, s35, v8
        v_add_f32 v32, v32, v4
        v_add_f32 v34, v34, v5
        v_cvt_pk_bf16_f32 v8, v32, v34
        s_mov_b64 exec, 3
        buffer_store_dword v8, v15, s[40:43], s53 offen
        s_cmp_lg_u32 s2, 0
        s_cbranch_scc1 L_fin
        s_mov_b64 exec, 1
        v_mov_b32 v18, 0
        buffer_store_dword v17, v18, s[36:39], 0 offen sc1""")
        self.stamp(13)
        A("L_fin:")
        self.stamp(15)
        self.stamp_flush()
        A("L_end:")
        A("s_endpgm")
        self.L.append('.section .rodata,"a"')
        self.L.append(".p2align 6")
        self.L.append(f".amdhsa_kernel {NAME}_kernel")
        self.L.append("  .amdhsa_next_free_vgpr 256")
        self.L.append("  .amdhsa_next_free_sgpr 102")
        self.L.append("  .amdhsa_accum_offset 256")
        self.L.append("  .amdhsa_group_segment_fixed_size 0")
        self.L.append("  .amdhsa_kernarg_size 104")
        self.L.append("  .amdhsa_user_sgpr_count 2")
        self.L.append("  .amdhsa_user_sgpr_kernarg_segment_ptr 1")
        self.L.append("  .amdhsa_system_sgpr_workgroup_id_x 1")
        self.L.append("  .amdhsa_float_denorm_mode_32 3")
        self.L.append(".end_amdhsa_kernel")
        lines = [l for l in self.L if l.strip()]
        flat = []
        for l in lines:
            flat += l.split("\n")
        a = next(i for i, l in enumerate(flat) if l.startswith(f"{NAME}_kernel:"))
        b = next(i for i, l in enumerate(flat) if l.startswith(".section"))
        body = [l for l in flat[a:b] if not l.strip().startswith("s_nop")]
        body, n = hazard.pad(body, verbose=self.verbose)
        return "\n".join(flat[:a] + body + flat[b:]) + "\n"


if __name__ == "__main__":
    import argparse
    ap = argparse.ArgumentParser()
    ap.add_argument("-o", default=f"cdna_kernels/{NAME}.s")
    ap.add_argument("--depth", type=int, default=28)
    ap.add_argument("--stamps", action="store_true")
    ap.add_argument("-v", action="store_true")
    a = ap.parse_args()
    open(a.o, "w").write(Gen(depth=a.depth, stamps=a.stamps, verbose=a.v).build())
```

```python
import sys, math, struct
import hazard

NAME = "recurrent_scan__sliding_block_cached__mixer_token_mlp__decode"


def f2u(x):
    return struct.unpack("<I", struct.pack("<f", x))[0]


HEADER = """; Kernarg layout for this problem (104 bytes, ptrs only, base s[0:1]):
"""

L_K = 0
L_V = 65536
L_WQ = 131072
L_WO = 0
L_SCR = 147456
S_PROG = L_SCR + 0
S_QFLAG = L_SCR + 256
S_PCNT = L_SCR + 260
S_K0 = L_SCR + 264
S_ML = L_SCR + 320
S_Q = L_SCR + 512
S_P = L_SCR + 768
S_O = L_SCR + 1280
LDS_BYTES = L_SCR + 4096

W_EPOCH = 0
W_QX = 0x10000
W_OX = 0x50000
W_LSE = 0x90000
W_SX = 0xA0000
W_ST = 0x100000

LOG2E = 1.4426950408889634
SCALE = 128 ** -0.5
C1 = -2.0 * math.sqrt(2.0 / math.pi) * LOG2E
C2 = C1 * 0.044715

POLL_MAX = 200000


class Gen:
    def __init__(self, depth=28, stamps=False, dbg=None, verbose=False, padto=0, nt=True):
        self.padto = padto
        self.nt = nt
        self.verbose = verbose
        self.L = []
        self.depth = depth
        self.stamps = stamps
        self.dbg = dbg
        self.nlab = 0

    def A(self, s):
        for line in s.strip("\n").split("\n"):
            self.L.append("    " + line.strip() if not line.strip().endswith(":") else line.strip())

    def lab(self, p):
        self.nlab += 1
        return f"L_{p}_{self.nlab}"

    def srd(self, d, b, n):
        self.A(f"""s_mov_b32 s{d}, s{b}
        s_and_b32 s{d+1}, s{b+1}, 0xffff
        s_mov_b32 s{d+2}, {n}
        s_mov_b32 s{d+3}, 0x20000""")

    def stamp(self, i):
        if self.stamps:
            assert i < 16
            self.A(f"s_memrealtime s[{64+2*i}:{65+2*i}]")

    def stamp_flush(self):
        if self.stamps:
            self.A("s_waitcnt lgkmcnt(0)")
            self.A(f"""s_lshl_b32 s62, s2, 10
            s_lshl_b32 s63, s3, 7
            s_add_u32 s62, s62, s63
            s_add_u32 s62, s62, {W_ST}
            s_mov_b64 exec, 1""")
            for i in range(16):
                self.A(f"""v_mov_b32 v250, s{64+2*i}
                v_mov_b32 v251, s{65+2*i}
                v_mov_b32 v252, {8*i}
                buffer_store_dwordx2 v[250:251], v252, s[36:39], s62 offen
                s_nop 1""")

    def allreduce(self, op, regs, tmps, bits):
        dpp = {1: "quad_perm:[1,0,3,2]", 2: "quad_perm:[2,3,0,1]", 4: "row_ror:4", 8: "row_ror:8"}
        n = len(regs)
        for b in bits:
            if b in dpp:
                for r in regs:
                    self.A(f"{op}_dpp v{r}, v{r}, v{r} {dpp[b]} row_mask:0xf bank_mask:0xf")
            else:
                sw = "v_permlane16_swap_b32" if b == 16 else "v_permlane32_swap_b32"
                for r, t in zip(regs, tmps):
                    self.A(f"v_mov_b32 v{t}, v{r}")
                for r, t in zip(regs, tmps):
                    self.A(f"{sw} v{t}, v{r}")
                for r, t in zip(regs, tmps):
                    self.A(f"{op} v{r}, v{r}, v{t}")

    def spin_lds(self, vaddr, vtmp, stmp, cmp, imm=0):
        l = self.lab("spin")
        d = self.lab("spind")
        self.A(f"""{l}:
        ds_read_b32 v{vtmp}, v{vaddr} offset:{imm}
        s_waitcnt lgkmcnt(0)
        v_readfirstlane_b32 s{stmp}, v{vtmp}
        s_cmp_{cmp[0]} s{stmp}, {cmp[1]}
        s_cbranch_scc1 {d}
        s_sleep 1
        s_branch {l}
        {d}:""")

    def ln_finish(self, mean, var, mr, rs, t):
        self.A(f"""v_cvt_pk_bf16_f32 v{t}, v{mean}, v{var}
        v_lshlrev_b32 v{mr}, 16, v{t}
        v_and_b32 v{rs}, s35, v{t}
        v_add_f32 v{rs}, {hex(f2u(1e-5))}, v{rs}
        v_cvt_pk_bf16_f32 v{t}, v{rs}, v{rs}
        v_lshlrev_b32 v{rs}, 16, v{t}
        v_sqrt_f32 v{rs}, v{rs}
        s_nop 0
        v_cvt_pk_bf16_f32 v{t}, v{rs}, v{rs}
        v_lshlrev_b32 v{rs}, 16, v{t}
        v_rcp_f32 v{rs}, v{rs}
        s_nop 0""")

    def unpack(self, dst, src, n):
        for k in range(n):
            self.A(f"v_lshlrev_b32 v{dst+2*k}, 16, v{src+k}")
            self.A(f"v_and_b32 v{dst+2*k+1}, s35, v{src+k}")

    def stats(self, x, n, tmp, bits, out_mean, out_var, sw0, sw1):
        np_ = n // 2
        self.A(f"v_pk_add_f32 v[{tmp}:{tmp+1}], v[{x}:{x+1}], v[{x+2}:{x+3}]")
        if np_ >= 4:
            self.A(f"v_pk_add_f32 v[{tmp+2}:{tmp+3}], v[{x+4}:{x+5}], v[{x+6}:{x+7}]")
        for k in range(4, np_):
            a = tmp + 2 * (k & 1)
            self.A(f"v_pk_add_f32 v[{a}:{a+1}], v[{a}:{a+1}], v[{x+2*k}:{x+2*k+1}]")
        self.A(f"v_pk_add_f32 v[{tmp}:{tmp+1}], v[{tmp}:{tmp+1}], v[{tmp+2}:{tmp+3}]")
        self.A(f"v_add_f32 v{out_mean}, v{tmp}, v{tmp+1}")
        self.allreduce("v_add_f32", [out_mean], [sw0], bits)
        self.A(f"v_mul_f32 v{out_mean}, {hex(f2u(1.0/512))}, v{out_mean}")
        assert out_mean % 2 == 0
        for k in range(np_):
            self.A(f"v_pk_add_f32 v[{tmp+2*k}:{tmp+2*k+1}], v[{x+2*k}:{x+2*k+1}], v[{out_mean}:{out_mean+1}] op_sel_hi:[1,0] neg_lo:[0,1] neg_hi:[0,1]")
        self.A(f"v_pk_mul_f32 v[{tmp}:{tmp+1}], v[{tmp}:{tmp+1}], v[{tmp}:{tmp+1}]")
        self.A(f"v_pk_mul_f32 v[{tmp+2}:{tmp+3}], v[{tmp+2}:{tmp+3}], v[{tmp+2}:{tmp+3}]")
        for k in range(2, np_):
            a = tmp + 2 * (k & 1)
            self.A(f"v_pk_fma_f32 v[{a}:{a+1}], v[{tmp+2*k}:{tmp+2*k+1}], v[{tmp+2*k}:{tmp+2*k+1}], v[{a}:{a+1}]")
        self.A(f"v_pk_add_f32 v[{tmp}:{tmp+1}], v[{tmp}:{tmp+1}], v[{tmp+2}:{tmp+3}]")
        self.A(f"v_add_f32 v{out_var}, v{tmp}, v{tmp+1}")
        self.allreduce("v_add_f32", [out_var], [sw1], bits)
        self.A(f"v_mul_f32 v{out_var}, {hex(f2u(1.0/512))}, v{out_var}")

    def normalize(self, x, npair, mr, rs, packed):
        assert mr % 2 == 0 and rs % 2 == 0
        for k in range(npair):
            self.A(f"v_pk_add_f32 v[{x+2*k}:{x+2*k+1}], v[{x+2*k}:{x+2*k+1}], v[{mr}:{mr+1}] op_sel_hi:[1,0] neg_lo:[0,1] neg_hi:[0,1]")
        for k in range(npair):
            self.A(f"v_cvt_pk_bf16_f32 v{packed+k}, v{x+2*k}, v{x+2*k+1}")
        self.unpack(x, packed, npair)
        for k in range(npair):
            self.A(f"v_pk_mul_f32 v[{x+2*k}:{x+2*k+1}], v[{x+2*k}:{x+2*k+1}], v[{rs}:{rs+1}] op_sel_hi:[1,0]")
        for k in range(npair):
            self.A(f"v_cvt_pk_bf16_f32 v{packed+k}, v{x+2*k}, v{x+2*k+1}")

    def poll(self, loads, tagregs):
        l = self.lab("poll")
        d = self.lab("polld")
        self.A(f"s_mov_b32 s60, {POLL_MAX}")
        self.A(f"{l}:")
        for s in loads:
            self.A(s)
        self.A("s_waitcnt vmcnt(0)")
        for r in tagregs:
            self.A(f"v_cmpx_eq_u32 vcc, s34, v{r}")
        self.A(f"""s_cmp_eq_u64 exec, -1
        s_mov_b64 exec, -1
        s_cbranch_scc1 {d}
        s_sub_u32 s60, s60, 1
        s_cmp_lg_u32 s60, 0
        s_cbranch_scc1 {l}
        {d}:""")

    def tag(self):
        self.A("""s_mul_i32 s34, s34, 1664525
        s_add_u32 s34, s34, 1013904223""")

    def build(self):
        A = self.A
        D = self.depth
        self.L.append(HEADER.rstrip("\n"))
        self.L.append(f"; @launch grid=(256,1,1) block=(512,1,1) lds={LDS_BYTES}")
        self.L.append('.amdgcn_target "amdgcn-amd-amdhsa--gfx950"')
        self.L.append(".text")
        self.L.append(f".globl {NAME}_kernel")
        self.L.append(".p2align 8")
        self.L.append(f".type {NAME}_kernel,@function")
        self.L.append(f"{NAME}_kernel:")
        if self.stamps:
            for i in range(16):
                A(f"s_mov_b64 s[{64+2*i}:{65+2*i}], 0")
        self.stamp(0)
        if self.padto:
            A("s_memrealtime s[96:97]")
        A("""s_cmp_ge_u32 s2, 256
        s_cbranch_scc1 L_end
        s_load_dwordx16 s[4:19], s[0:1], 0
        s_load_dwordx8 s[20:27], s[0:1], 64
        s_load_dwordx2 s[28:29], s[0:1], 96
        v_lshrrev_b32 v1, 6, v0
        v_and_b32 v0, 63, v0
        v_readfirstlane_b32 s3, v1
        s_and_b32 s30, s2, 7
        s_lshl_b32 s30, s30, 2
        s_lshr_b32 s31, s2, 3
        s_lshr_b32 s32, s31, 3
        s_add_u32 s30, s30, s32
        s_and_b32 s31, s31, 7
        s_lshr_b32 s32, s31, 2
        s_and_b32 s33, s31, 3
        s_mov_b32 s35, 0xffff0000
        v_lshrrev_b32 v1, 4, v0
        v_and_b32 v2, 15, v0
        v_lshlrev_b32 v3, 4, v0
        s_cmp_eq_u32 s3, 6
        s_cbranch_scc1 L_loader
        s_cmp_eq_u32 s3, 4
        s_cbranch_scc1 L_qwave
        s_cmp_eq_u32 s3, 5
        s_cbranch_scc1 L_gwave
        s_cmp_eq_u32 s3, 7
        s_cbranch_scc1 L_swave""")

        A("s_setprio 2")
        A(f"""v_xor_b32 v8, v1, v2
        v_lshlrev_b32 v8, 4, v8
        v_lshl_add_u32 v8, v2, 8, v8
        s_lshl_b32 s40, s3, 14
        v_add_u32 v8, s40, v8
        v_xor_b32 v9, 64, v8
        v_xor_b32 v10, 0x80, v8
        v_xor_b32 v11, 0xc0, v8
        v_cmp_eq_u32 s[42:43], 1, v1
        v_cmp_eq_u32 s[44:45], 2, v1
        v_cmp_eq_u32 s[46:47], 3, v1
        v_mov_b32 v12, {L_SCR}
        v_lshlrev_b32 v13, 4, v1
        v_add_u32 v13, {S_Q}, v13
        s_add_u32 s41, s3, 1
        s_lshl_b32 s41, s41, 2
        s_waitcnt lgkmcnt(0)
        s_load_dword s34, s[28:29], {W_EPOCH}""")
        self.srd(36, 28, 0x10000000)
        A("s_barrier")
        self.spin_lds(12, 14, 40, ("ge_i32", "s41"))
        self.stamp(1)
        for T in range(4):
            for ks in range(4):
                r = 32 + 16 * T + 4 * ks
                A(f"ds_read_b128 v[{r}:{r+3}], v{8+ks} offset:{T*4096}")
        self.tag()
        A(f"""s_waitcnt lgkmcnt(0)
        s_cmp_lg_u32 s3, 0
        s_cbranch_scc1 L_k_nok0
        s_mov_b64 exec, 1
        v_mov_b32 v14, 1
        ds_write_b32 v12, v14 offset:{S_K0-L_SCR}
        s_mov_b64 exec, -1
        L_k_nok0:""")
        self.spin_lds(12, 14, 40, ("lg_u32", "0"), imm=S_QFLAG - L_SCR)
        self.stamp(2)
        for ks in range(4):
            A(f"ds_read_b128 v[{96+4*ks}:{99+4*ks}], v13 offset:{ks*64}")
        for ks in range(4):
            A(f"s_waitcnt lgkmcnt({3-ks})")
            for T in range(4):
                kf = 32 + 16 * T + 4 * ks
                c = 112 + 4 * T
                src = "0" if ks == 0 else f"v[{c}:{c+3}]"
                A(f"v_mfma_f32_16x16x32_bf16 v[{c}:{c+3}], v[{96+4*ks}:{99+4*ks}], v[{kf}:{kf+3}], {src}")
        A(f"""v_lshlrev_b32 v15, 1, v0
        s_lshl_b32 s40, s3, 7
        s_add_u32 s40, s40, {S_P}
        v_add_u32 v15, s40, v15
        s_lshl_b32 s40, s3, 3
        s_add_u32 s40, s40, {S_ML}
        v_mov_b32 v20, s40
        s_nop 0
        v_cndmask_b32 v16, v112, v116, s[42:43]
        v_cndmask_b32 v16, v16, v120, s[44:45]
        v_cndmask_b32 v16, v16, v124, s[46:47]
        v_cvt_pk_bf16_f32 v16, v16, v16
        v_lshlrev_b32 v16, 16, v16
        v_mul_f32 v16, {hex(f2u(SCALE))}, v16
        v_cvt_pk_bf16_f32 v16, v16, v16
        v_lshlrev_b32 v16, 16, v16
        v_mul_f32 v16, {hex(f2u(LOG2E))}, v16
        v_mov_b32 v18, v16""")
        self.allreduce("v_max_f32", [18], [17], [1, 2, 4, 8, 16, 32])
        A(f"""v_sub_f32 v16, v16, v18
        v_exp_f32 v19, v16
        s_nop 0
        v_cvt_pk_bf16_f32 v16, v19, v19
        ds_write_b16 v15, v16""")
        self.allreduce("v_add_f32", [19], [17], [1, 2, 4, 8, 16, 32])
        A(f"""s_mov_b64 exec, 1
        ds_write_b64 v20, v[18:19]
        v_mov_b32 v14, 1
        s_waitcnt lgkmcnt(0)
        ds_add_u32 v12, v14 offset:{S_PCNT-L_SCR}
        s_mov_b64 exec, -1""")
        self.stamp(3)
        A("s_branch L_common")

        A("L_loader:")
        A(f"""v_xor_b32 v8, v1, v2
        v_lshlrev_b32 v8, 4, v8
        v_lshl_add_u32 v8, v1, 8, v8
        v_xor_b32 v9, 64, v8
        v_xor_b32 v10, 0x80, v8
        v_xor_b32 v11, 0xc0, v8
        v_lshlrev_b32 v12, 1, v1
        v_xor_b32 v12, v12, v2
        v_lshlrev_b32 v12, 4, v12
        v_lshl_add_u32 v12, v1, 8, v12
        v_xor_b32 v13, 0x80, v12
        v_and_b32 v14, 1, v1
        v_lshlrev_b32 v14, 1, v14
        v_and_b32 v15, 7, v0
        v_xor_b32 v14, v14, v15
        v_lshlrev_b32 v14, 4, v14
        v_lshrrev_b32 v15, 3, v0
        v_lshl_add_u32 v14, v15, 10, v14
        v_xor_b32 v15, 64, v14
        v_lshlrev_b32 v16, 2, v0
        v_add_u32 v16, {S_PROG}, v16
        v_mov_b32 v17, {-(D//4)}
        s_lshl_b32 s52, s32, 5
        s_add_u32 s52, s52, s30
        s_lshl_b32 s52, s52, 20
        s_lshl_b32 s53, s33, 16
        s_add_u32 s52, s52, s53
        s_add_u32 s52, s52, 0xC0000
        s_lshl_b32 s55, s30, 17
        s_lshl_b32 s53, s31, 7
        s_add_u32 s55, s55, s53
        s_waitcnt lgkmcnt(0)
        s_load_dword s34, s[28:29], {W_EPOCH}""")
        self.srd(40, 6, 0x4000000)
        self.srd(44, 8, 0x4000000)
        self.srd(48, 12, 0x400000)
        self.srd(36, 28, 0x10000000)
        A(f"""s_mov_b32 s53, s52
        s_mov_b32 s54, {L_K}
        s_barrier""")
        self.stamp(1)
        A(f"""L_ld_k:
        s_mov_b32 m0, s54
        s_add_u32 s54, s54, 4096
        buffer_load_dwordx4 v8, s[40:43], s53 offen nt lds
        buffer_load_dwordx4 v9, s[40:43], s53 offen offset:1024 nt lds
        buffer_load_dwordx4 v10, s[40:43], s53 offen offset:2048 nt lds
        buffer_load_dwordx4 v11, s[40:43], s53 offen offset:3072 nt lds
        s_add_u32 s53, s53, 4096
        v_add_u32 v17, 1, v17
        s_waitcnt vmcnt({D})
        ds_write_b32 v16, v17
        s_cmp_lt_u32 s54, {L_V}
        s_cbranch_scc1 L_ld_k
        s_mov_b32 s53, s52""")
        self.stamp(2)
        A(f"""L_ld_v:
        s_mov_b32 m0, s54
        s_add_u32 s54, s54, 4096
        buffer_load_dwordx4 v12, s[44:47], s53 offen nt lds
        buffer_load_dwordx4 v12, s[44:47], s53 offen offset:1024 nt lds
        buffer_load_dwordx4 v13, s[44:47], s53 offen offset:2048 nt lds
        buffer_load_dwordx4 v13, s[44:47], s53 offen offset:3072 nt lds
        s_add_u32 s53, s53, 4096
        v_add_u32 v17, 1, v17
        s_waitcnt vmcnt({D})
        ds_write_b32 v16, v17
        s_cmp_lt_u32 s54, {L_V+65536}
        s_cbranch_scc1 L_ld_v
        v_mov_b32 v12, {L_SCR}""")
        self.stamp(3)
        self.spin_lds(12, 8, 53, ("lg_u32", "0"), imm=S_K0 - L_SCR)
        self.tag()
        A(f"""s_mov_b32 s54, {L_WO}
        L_ld_o:
        s_mov_b32 m0, s54
        s_add_u32 s54, s54, 4096
        buffer_load_dwordx4 v14, s[48:51], s55 offen nt lds
        s_add_u32 s55, s55, {8192-1024}
        buffer_load_dwordx4 v15, s[48:51], s55 offen offset:1024 nt lds
        s_add_u32 s55, s55, {8192-1024}
        buffer_load_dwordx4 v14, s[48:51], s55 offen offset:2048 nt lds
        s_add_u32 s55, s55, {8192-1024}
        buffer_load_dwordx4 v15, s[48:51], s55 offen offset:3072 nt lds
        s_add_u32 s55, s55, {8192+3072}
        s_waitcnt vmcnt({D})
        s_cmp_lt_u32 s54, {L_WO+16384}
        s_cbranch_scc1 L_ld_o""")
        self.stamp(4)
        A("s_branch L_common")

        A("L_qwave:")
        A("s_setprio 3")
        A(f"""v_bfe_u32 v8, v0, 2, 1
        v_lshlrev_b32 v8, 10, v8
        v_and_b32 v9, 3, v0
        v_lshrrev_b32 v10, 3, v0
        v_lshl_add_u32 v11, v10, 2, v9
        v_lshl_add_u32 v40, v11, 5, v8
        v_lshl_add_u32 v41, v9, 6, v8
        v_lshl_add_u32 v41, v1, 4, v41
        s_lshl_b32 s52, s33, 8
        v_and_b32 v8, 1, v1
        v_lshlrev_b32 v8, 1, v8
        v_and_b32 v11, 7, v0
        v_xor_b32 v8, v8, v11
        v_lshlrev_b32 v8, 4, v8
        v_lshl_add_u32 v42, v10, 13, v8
        v_xor_b32 v43, 64, v42
        s_lshl_b32 s53, s33, 20
        s_lshl_b32 s54, s30, 8
        s_add_u32 s53, s53, s54
        s_lshl_b32 s54, s32, 7
        s_add_u32 s53, s53, s54
        s_mov_b32 s54, {L_WQ}
        s_waitcnt lgkmcnt(0)
        s_load_dword s34, s[28:29], {W_EPOCH}""")
        self.srd(40, 4, 2048)
        self.srd(44, 10, 0x400000)
        A("""buffer_load_dwordx4 v[8:11], v40, s[40:43], 0 offen
        buffer_load_dwordx4 v[12:15], v40, s[40:43], 0 offen offset:16
        buffer_load_dwordx4 v[16:19], v41, s[40:43], s52 offen""")
        A(f"""L_ld_q:
        s_mov_b32 m0, s54
        s_add_u32 s54, s54, 4096
        buffer_load_dwordx4 v42, s[44:47], s53 offen nt lds
        s_add_u32 s53, s53, {65536-1024}
        buffer_load_dwordx4 v43, s[44:47], s53 offen offset:1024 nt lds
        s_add_u32 s53, s53, {65536-1024}
        buffer_load_dwordx4 v42, s[44:47], s53 offen offset:2048 nt lds
        s_add_u32 s53, s53, {65536-1024}
        buffer_load_dwordx4 v43, s[44:47], s53 offen offset:3072 nt lds
        s_add_u32 s53, s53, {65536+3072}
        s_cmp_lt_u32 s54, {L_WQ+16384}
        s_cbranch_scc1 L_ld_q
        s_barrier""")
        self.stamp(1)
        self.srd(36, 28, 0x10000000)
        A(f"""v_lshrrev_b32 v44, 2, v2
        v_lshrrev_b32 v45, 1, v44
        v_and_b32 v46, 1, v1
        v_lshl_add_u32 v45, v46, 1, v45
        v_lshl_add_u32 v44, v1, 3, v44
        v_lshlrev_b32 v44, 7, v44
        v_lshl_add_u32 v44, v45, 5, v44
        v_and_b32 v45, 3, v0
        v_lshl_add_u32 v44, v45, 3, v44
        v_add_u32 v44, {L_WQ}, v44
        v_xor_b32 v45, 32, v44
        v_xor_b32 v46, 64, v44
        v_xor_b32 v47, 0x60, v44
        s_waitcnt vmcnt(17)""")
        self.unpack(20, 8, 8)
        self.stats(20, 16, 180, [1, 2, 8, 16, 32], 36, 38, 37, 37)
        self.ln_finish(36, 38, 40, 42, 37)
        A("s_waitcnt vmcnt(16)")
        self.unpack(20, 16, 4)
        self.normalize(20, 4, 40, 42, 16)
        A("s_waitcnt lgkmcnt(0)")
        self.tag()
        self.stamp(2)
        for ks in range(4):
            A(f"s_waitcnt vmcnt({12-4*ks})")
            for t in range(4):
                b = 48 + 16 * ks + 4 * t
                A(f"ds_read_b64_tr_b16 v[{b}:{b+1}], v{44+t} offset:{ks*4096}")
                A(f"ds_read_b64_tr_b16 v[{b+2}:{b+3}], v{44+t} offset:{ks*4096+512}")
            for t in range(4):
                b = 48 + 16 * ks + 4 * t
                c = 112 + 16 * ks + 4 * t
                A(f"s_waitcnt lgkmcnt({6-2*t})")
                A(f"v_mfma_f32_16x16x32_bf16 v[{c}:{c+3}], v[16:19], v[{b}:{b+3}], 0")
        self.stamp(3)
        A(f"""v_mov_b32 v181, s34
        v_mov_b32 v183, s34
        v_mov_b32 v185, s34
        v_mov_b32 v187, s34
        v_lshlrev_b32 v188, 12, v1
        v_lshl_add_u32 v188, v2, 4, v188
        s_lshl_b32 s52, s30, 13
        s_lshl_b32 s53, s33, 10
        s_add_u32 s53, s53, s52
        s_lshl_b32 s54, s32, 9
        s_add_u32 s53, s53, s54
        s_add_u32 s53, s53, {W_QX}
        s_lshl_b32 s54, s32, 12
        s_add_u32 s52, s52, s54
        s_add_u32 s52, s52, {W_QX}""")
        for t in range(4):
            o = 180 + 2 * t
            A(f"v_add_f32 v{o}, v{112+4*t}, v{128+4*t+1}")
            A(f"v_add_f32 v{o}, v{o}, v{144+4*t+2}")
        for t in range(4):
            o = 180 + 2 * t
            A(f"v_add_f32 v{o}, v{o}, v{160+4*t+3}")
        A(f"""s_mov_b32 exec_hi, 0
        buffer_store_dwordx4 v[180:183], v188, s[36:39], s53 offen sc1
        buffer_store_dwordx4 v[184:187], v188, s[36:39], s53 offen offset:256 sc1
        s_mov_b32 exec_hi, -1
        v_lshlrev_b32 v24, 6, v1
        v_lshl_add_u32 v24, v2, 1, v24
        v_add_u32 v24, {S_Q}, v24
        v_mov_b32 v12, {L_SCR}
        v_mov_b32 v25, 1""")
        self.stamp(4)
        self.poll([f"buffer_load_dwordx4 v[{48+4*k}:{51+4*k}], v3, s[36:39], s52 offen offset:{k*1024} sc1" for k in range(4)],
                  [49, 51, 53, 55, 57, 59, 61, 63])
        A(f"""v_add_f32 v48, v48, v52
        v_add_f32 v50, v50, v54
        v_add_f32 v56, v56, v60
        v_add_f32 v58, v58, v62
        v_add_f32 v48, v48, v56
        v_add_f32 v50, v50, v58
        v_cvt_pk_bf16_f32 v48, v48, v50
        ds_write_b16 v24, v48
        ds_write_b16_d16_hi v24, v48 offset:32
        s_waitcnt lgkmcnt(0)
        s_mov_b64 exec, 1
        ds_write_b32 v12, v25 offset:{S_QFLAG-L_SCR}
        s_mov_b64 exec, -1""")
        self.stamp(5)
        A("s_branch L_common")

        A("L_gwave:")
        A("s_setprio 1")
        A(f"""s_and_b32 s52, s2, 127
        s_lshr_b32 s53, s2, 7
        s_lshl_b32 s53, s53, 10
        v_lshl_add_u32 v40, v0, 1, s52
        v_add_u32 v41, 1, v40
        v_and_b32 v40, 127, v40
        v_and_b32 v41, 127, v41
        v_lshlrev_b32 v40, 3, v40
        v_lshlrev_b32 v41, 3, v41
        v_mov_b32 v42, 0
        s_waitcnt lgkmcnt(0)
        s_load_dword s34, s[28:29], {W_EPOCH}""")
        self.srd(40, 4, 2048)
        self.srd(44, 16, 2752)
        self.srd(48, 18, 2752)
        A("""buffer_load_dwordx2 v[8:9], v40, s[40:43], s53 offen
        buffer_load_dwordx2 v[10:11], v41, s[40:43], s53 offen""")
        for k in range(3):
            A(f"buffer_load_dwordx4 v[{12+4*k}:{15+4*k}], v3, s[44:47], 0 offen offset:{1024*k}")
        for k in range(3):
            A(f"buffer_load_dwordx4 v[{24+4*k}:{27+4*k}], v3, s[48:51], 0 offen offset:{1024*k}")
        self.srd(44, 20, 2752)
        self.srd(48, 22, 2)
        for k in range(3):
            A(f"buffer_load_dwordx4 v[{204+4*k}:{207+4*k}], v3, s[44:47], 0 offen offset:{1024*k}")
        A("buffer_load_ushort v48, v42, s[48:51], 0 offen")
        A("s_barrier")
        self.stamp(1)
        self.srd(36, 28, 0x10000000)
        A(f"""s_mov_b32 s44, {hex(f2u(C2))}
        s_mov_b32 s45, {hex(f2u(C2))}
        s_mov_b32 s46, 1.0
        s_mov_b32 s47, 1.0
        v_mov_b32 v138, {hex(f2u(C1))}
        v_mov_b32 v139, {hex(f2u(C1))}
        v_and_b32 v49, 1, v0
        v_cmp_eq_u32 s[48:49], 1, v49
        s_waitcnt vmcnt(10)""")
        self.unpack(50, 8, 4)
        A("""v_readfirstlane_b32 s56, v50
        v_readfirstlane_b32 s57, v51
        v_readfirstlane_b32 s58, v52
        v_readfirstlane_b32 s59, v53""")
        self.stats(50, 8, 58, [1, 2, 4, 8, 16, 32], 36, 38, 37, 37)
        A("""v_mov_b32 v4, s56
        v_mov_b32 v5, s57
        v_mov_b32 v6, s58
        v_mov_b32 v7, s59
        v_cndmask_b32 v4, v4, v6, s[48:49]
        v_cndmask_b32 v5, v5, v7, s[48:49]""")
        self.ln_finish(36, 38, 40, 42, 37)
        self.normalize(50, 4, 40, 42, 8)
        self.unpack(50, 8, 4)
        self.stats(50, 8, 58, [1, 2, 4, 8, 16, 32], 36, 38, 37, 37)
        self.ln_finish(36, 38, 40, 42, 37)
        self.normalize(50, 2, 40, 42, 8)
        self.unpack(50, 8, 2)
        A("""s_nop 0
        v_readfirstlane_b32 s56, v50
        v_readfirstlane_b32 s57, v51
        v_readfirstlane_b32 s58, v52
        v_readfirstlane_b32 s59, v53
        s_waitcnt vmcnt(0)""")
        self.stamp(2)
        self.unpack(64, 12, 12)
        self.unpack(88, 24, 12)
        self.unpack(112, 204, 12)
        for i in range(4):
            A(f"v_mov_b32 v{156+2*i}, 0")
            A(f"v_mov_b32 v{157+2*i}, 0")
        for k in range(12):
            w1, b1, w2 = 64 + 2 * k, 88 + 2 * k, 112 + 2 * k
            for i in range(4):
                U = 140 + 2 * i
                hp = 56 + (i & 2)
                sel = i & 1
                A(f"v_pk_fma_f32 v[{U}:{U+1}], v[{w1}:{w1+1}], s[{hp}:{hp+1}], v[{b1}:{b1+1}] op_sel:[0,{sel},0] op_sel_hi:[1,{sel},1]")
            for i in range(4):
                U, T = 140 + 2 * i, 148 + 2 * i
                A(f"v_pk_mul_f32 v[{T}:{T+1}], v[{U}:{U+1}], v[{U}:{U+1}]")
            for i in range(4):
                T = 148 + 2 * i
                A(f"v_pk_fma_f32 v[{T}:{T+1}], v[{T}:{T+1}], s[44:45], v[138:139]")
            for i in range(4):
                U, T = 140 + 2 * i, 148 + 2 * i
                A(f"v_pk_mul_f32 v[{T}:{T+1}], v[{T}:{T+1}], v[{U}:{U+1}]")
            for i in range(8):
                A(f"v_exp_f32 v{148+i}, v{148+i}")
            for i in range(4):
                T = 148 + 2 * i
                A(f"v_pk_add_f32 v[{T}:{T+1}], v[{T}:{T+1}], s[46:47]")
            for i in range(8):
                A(f"v_rcp_f32 v{148+i}, v{148+i}")
            for i in range(4):
                U = 140 + 2 * i
                A(f"v_pk_mul_f32 v[{U}:{U+1}], v[{U}:{U+1}], v[{w2}:{w2+1}]")
            for i in range(4):
                U, T, C = 140 + 2 * i, 148 + 2 * i, 156 + 2 * i
                A(f"v_pk_fma_f32 v[{C}:{C+1}], v[{U}:{U+1}], v[{T}:{T+1}], v[{C}:{C+1}]")
        for i in range(4):
            A(f"v_add_f32 v{140+i}, v{156+2*i}, v{157+2*i}")
        self.allreduce("v_add_f32", [140, 141, 142, 143], [144, 145, 146, 147], [1, 2, 4, 8, 16, 32])
        A(f"""v_cndmask_b32 v6, v140, v142, s[48:49]
        v_cndmask_b32 v7, v141, v143, s[48:49]
        v_lshlrev_b32 v48, 16, v48
        v_cvt_pk_bf16_f32 v8, v6, v7
        v_lshlrev_b32 v6, 16, v8
        v_and_b32 v7, s35, v8
        v_add_f32 v6, v6, v48
        v_add_f32 v7, v7, v48
        v_cvt_pk_bf16_f32 v8, v6, v7
        v_lshlrev_b32 v6, 16, v8
        v_and_b32 v7, s35, v8
        v_mul_f32 v8, {hex(f2u(-LOG2E))}, v6
        v_mul_f32 v9, {hex(f2u(-LOG2E))}, v7
        v_exp_f32 v8, v8
        v_exp_f32 v9, v9
        s_nop 0
        v_add_f32 v8, 1.0, v8
        v_add_f32 v9, 1.0, v9
        v_rcp_f32 v8, v8
        v_rcp_f32 v9, v9
        s_nop 0
        v_mul_f32 v6, v6, v8
        v_mul_f32 v7, v7, v9
        v_cvt_pk_bf16_f32 v8, v6, v7
        v_lshlrev_b32 v6, 16, v8
        v_and_b32 v7, s35, v8
        v_mov_b32 v12, {L_SCR}
        s_waitcnt lgkmcnt(0)""")
        self.tag()
        self.stamp(3)
        A("s_branch L_common")

        A("L_swave:")
        A(f"""v_lshlrev_b32 v8, 2, v0
        v_add_u32 v8, {L_SCR}, v8
        v_mov_b32 v9, 0x80000000
        v_mov_b32 v10, 0
        v_mov_b32 v12, {L_SCR}
        ds_write_b32 v8, v9
        ds_write_b32 v8, v10 offset:256
        s_waitcnt lgkmcnt(0)
        s_load_dword s34, s[28:29], {W_EPOCH}""")
        self.srd(36, 28, 0x10000000)
        A("s_barrier")
        A("s_waitcnt lgkmcnt(0)")
        self.tag()

        A("L_common:")
        A(f"""v_lshrrev_b32 v20, 2, v2
        v_and_b32 v21, 1, v1
        v_lshl_add_u32 v22, v21, 2, v20
        v_xor_b32 v22, s3, v22
        v_lshl_add_u32 v23, v1, 3, v20
        v_lshlrev_b32 v24, 8, v23
        v_lshl_add_u32 v24, v22, 5, v24
        v_and_b32 v25, 3, v0
        v_lshl_add_u32 v24, v25, 3, v24
        v_add_u32 v24, {L_V}, v24
        v_lshrrev_b32 v22, 1, v20
        v_lshl_add_u32 v22, v21, 1, v22
        v_xor_b32 v22, s3, v22
        v_and_b32 v22, 3, v22
        v_lshlrev_b32 v26, 7, v23
        v_lshl_add_u32 v26, v22, 5, v26
        v_lshl_add_u32 v26, v25, 3, v26
        v_lshlrev_b32 v27, 4, v1
        v_add_u32 v28, {S_P}, v27
        v_and_b32 v29, 7, v0
        v_mul_u32_u24 v29, 288, v29
        v_add_u32 v29, v29, v27
        v_add_u32 v29, {S_O}, v29
        s_mul_i32 s52, s3, 288
        s_add_u32 s52, s52, {S_O}
        v_lshlrev_b32 v30, 2, v0
        v_add_u32 v30, s52, v30
        v_lshlrev_b32 v31, 3, v0
        v_lshlrev_b32 v19, 5, v21
        s_lshl_b32 s52, s30, 13
        s_add_u32 s52, s52, {W_OX}
        s_lshl_b32 s53, s31, 10
        s_add_u32 s53, s53, s52
        s_lshl_b32 s54, s3, 7
        s_add_u32 s53, s53, s54
        s_lshl_b32 s54, s3, 10
        s_add_u32 s52, s52, s54
        s_lshl_b32 s54, s30, 7
        s_add_u32 s54, s54, {W_LSE}""")
        self.spin_lds(12, 14, 55, ("ge_u32", "4"), imm=S_PCNT - L_SCR)
        self.stamp(6)
        A(f"""ds_read_b128 v[160:163], v12 offset:{S_ML-L_SCR}
        ds_read_b128 v[164:167], v12 offset:{S_ML-L_SCR+16}""")
        for ks in range(8):
            A(f"ds_read_b128 v[{128+4*ks}:{131+4*ks}], v28 offset:{ks*64}")
        A(f"""s_waitcnt lgkmcnt(8)
        v_max3_f32 v14, v160, v162, v164
        v_max_f32 v14, v14, v166
        v_sub_f32 v160, v160, v14
        v_sub_f32 v162, v162, v14
        v_sub_f32 v164, v164, v14
        v_sub_f32 v166, v166, v14
        v_exp_f32 v160, v160
        v_exp_f32 v162, v162
        v_exp_f32 v164, v164
        v_exp_f32 v166, v166
        v_mul_f32 v15, v160, v161
        v_fmac_f32 v15, v162, v163
        v_fmac_f32 v15, v164, v165
        v_fmac_f32 v15, v166, v167
        v_rcp_f32 v16, v15
        v_log_f32 v15, v15
        v_mov_b32 v17, s34
        v_mul_f32 v160, v160, v16
        v_mul_f32 v162, v162, v16
        v_mul_f32 v164, v164, v16
        v_mul_f32 v166, v166, v16
        v_add_f32 v16, v14, v15
        s_cmp_lg_u32 s3, 7
        s_cbranch_scc1 L_nolse
        s_lshl_b32 s55, s31, 3
        s_add_u32 s55, s55, s54
        v_mov_b32 v18, 0
        s_mov_b64 exec, 1
        buffer_store_dwordx2 v[16:17], v18, s[36:39], s55 offen sc1
        s_mov_b64 exec, -1
        L_nolse:
        s_waitcnt vmcnt(16) lgkmcnt(0)""")
        self.stamp(7)
        A("s_barrier")
        self.stamp(8)
        for ks in range(8):
            b = 168 + 4 * ks
            A(f"ds_read_b64_tr_b16 v[{b}:{b+1}], v24 offset:{ks*8192}")
            A(f"ds_read_b64_tr_b16 v[{b+2}:{b+3}], v24 offset:{ks*8192+1024}")
        for ks in range(8):
            b = 168 + 4 * ks
            c = 200 + 4 * (ks >> 1)
            src = "0" if ks % 2 == 0 else f"v[{c}:{c+3}]"
            A(f"s_waitcnt lgkmcnt({14-2*ks})")
            A(f"v_mfma_f32_16x16x32_bf16 v[{c}:{c+3}], v[{128+4*ks}:{131+4*ks}], v[{b}:{b+3}], {src}")
        A(f"""v_mul_f32 v16, v160, v200
        s_nop 1
        v_fmac_f32 v16, v162, v204
        s_nop 0
        v_fmac_f32 v16, v164, v208
        s_nop 1
        v_fmac_f32 v16, v166, v212
        s_mov_b64 exec, 0xffff
        buffer_store_dwordx2 v[16:17], v31, s[36:39], s53 offen sc1
        s_mov_b64 exec, -1""")
        self.stamp(9)
        self.poll(["buffer_load_dwordx4 v[32:35], v3, s[36:39], s52 offen sc1",
                   "buffer_load_dwordx4 v[36:39], v19, s[36:39], s54 offen sc1",
                   "buffer_load_dwordx4 v[40:43], v19, s[36:39], s54 offen offset:16 sc1"],
                  [33, 35, 37, 39, 41, 43])
        self.stamp(10)
        A(f"""v_cvt_pk_bf16_f32 v32, v32, v34
        ds_write_b32 v30, v32
        s_waitcnt lgkmcnt(0)
        s_barrier""")
        self.stamp(11)
        A("""s_cmp_eq_u32 s3, 5
        s_cbranch_scc1 L_final
        s_cmp_ge_u32 s3, 4
        s_cbranch_scc1 L_fin""")
        for ks in range(4):
            A(f"ds_read_b128 v[{48+4*ks}:{51+4*ks}], v29 offset:{ks*64}")
            b = 64 + 4 * ks
            A(f"ds_read_b64_tr_b16 v[{b}:{b+1}], v26 offset:{L_WO+ks*4096}")
            A(f"ds_read_b64_tr_b16 v[{b+2}:{b+3}], v26 offset:{L_WO+ks*4096+512}")
        A(f"""v_max3_f32 v14, v36, v38, v40
        v_max_f32 v14, v14, v42
        v_sub_f32 v36, v36, v14
        v_sub_f32 v38, v38, v14
        v_sub_f32 v40, v40, v14
        v_sub_f32 v42, v42, v14
        v_exp_f32 v36, v36
        v_exp_f32 v38, v38
        v_exp_f32 v40, v40
        v_exp_f32 v42, v42""")
        for ks in range(4):
            b = 64 + 4 * ks
            src = "0" if ks == 0 else "v[80:83]"
            A(f"s_waitcnt lgkmcnt({9-3*ks})")
            A(f"v_mfma_f32_16x16x32_bf16 v[80:83], v[{48+4*ks}:{51+4*ks}], v[{b}:{b+3}], {src}")
        A(f"""v_add_f32 v15, v36, v38
        v_add_f32 v14, v40, v42
        v_add_f32 v15, v15, v14
        v_rcp_f32 v15, v15
        v_lshlrev_b32 v18, 12, v1
        v_lshl_add_u32 v18, v2, 3, v18
        s_lshl_b32 s52, s30, 13
        s_lshl_b32 s53, s31, 9
        s_add_u32 s52, s52, s53
        s_lshl_b32 s53, s3, 7
        s_add_u32 s52, s52, s53
        s_add_u32 s52, s52, {W_SX}
        v_mul_f32 v16, v36, v80
        v_fmac_f32 v16, v38, v81
        v_fmac_f32 v16, v40, v82
        v_fmac_f32 v16, v42, v83
        v_mul_f32 v16, v16, v15
        s_mov_b32 exec_hi, 0
        buffer_store_dwordx2 v[16:17], v18, s[36:39], s52 offen sc1""")
        self.stamp(12)
        A("s_branch L_fin")

        A("L_final:")
        self.srd(40, 24, 2048)
        A(f"""v_lshrrev_b32 v18, 1, v0
        v_lshlrev_b32 v18, 13, v18
        v_and_b32 v14, 1, v0
        v_lshl_add_u32 v18, v14, 4, v18
        s_lshl_b32 s52, s2, 5
        s_add_u32 s52, s52, {W_SX}
        s_lshl_b32 s53, s2, 3
        v_lshlrev_b32 v15, 2, v0""")
        self.poll(["buffer_load_dwordx4 v[32:35], v18, s[36:39], s52 offen sc1"], [33, 35])
        self.stamp(12)
        self.allreduce("v_add_f32", [32, 34], [33, 35], [2, 4, 8, 16, 32])
        A(f"""v_cvt_pk_bf16_f32 v8, v32, v34
        v_lshlrev_b32 v32, 16, v8
        v_and_b32 v34, s35, v8
        v_mul_f32 v32, v32, v6
        v_mul_f32 v34, v34, v7
        v_cvt_pk_bf16_f32 v8, v32, v34
        v_lshlrev_b32 v32, 16, v8
        v_and_b32 v34, s35, v8
        v_add_f32 v32, v32, v4
        v_add_f32 v34, v34, v5
        v_cvt_pk_bf16_f32 v8, v32, v34
        s_mov_b64 exec, 3
        buffer_store_dword v8, v15, s[40:43], s53 offen
        s_cmp_lg_u32 s2, 0
        s_cbranch_scc1 L_fin
        s_mov_b64 exec, 1
        v_mov_b32 v18, 0
        buffer_store_dword v17, v18, s[36:39], 0 offen sc1""")
        self.stamp(13)
        A("L_fin:")
        self.stamp(15)
        self.stamp_flush()
        if self.padto:
            A(f"""L_pad:
            s_memrealtime s[98:99]
            s_waitcnt lgkmcnt(0)
            s_sub_u32 s98, s98, s96
            s_cmp_lt_u32 s98, {self.padto}
            s_cbranch_scc1 L_pad""")
        A("L_end:")
        A("s_endpgm")
        self.L.append('.section .rodata,"a"')
        self.L.append(".p2align 6")
        self.L.append(f".amdhsa_kernel {NAME}_kernel")
        self.L.append("  .amdhsa_next_free_vgpr 256")
        self.L.append("  .amdhsa_next_free_sgpr 102")
        self.L.append("  .amdhsa_accum_offset 256")
        self.L.append("  .amdhsa_group_segment_fixed_size 0")
        self.L.append("  .amdhsa_kernarg_size 104")
        self.L.append("  .amdhsa_user_sgpr_count 2")
        self.L.append("  .amdhsa_user_sgpr_kernarg_segment_ptr 1")
        self.L.append("  .amdhsa_system_sgpr_workgroup_id_x 1")
        self.L.append("  .amdhsa_float_denorm_mode_32 3")
        self.L.append(".end_amdhsa_kernel")
        lines = [l for l in self.L if l.strip()]
        flat = []
        for l in lines:
            flat += l.split("\n")
        a = next(i for i, l in enumerate(flat) if l.startswith(f"{NAME}_kernel:"))
        b = next(i for i, l in enumerate(flat) if l.startswith(".section"))
        body = [l for l in flat[a:b] if not l.strip().startswith("s_nop")]
        if not self.nt:
            body = [l.replace(" nt lds", " lds") for l in body]
        body, n = hazard.pad(body, verbose=self.verbose)
        return "\n".join(flat[:a] + body + flat[b:]) + "\n"


if __name__ == "__main__":
    import argparse
    ap = argparse.ArgumentParser()
    ap.add_argument("-o", default=f"cdna_kernels/{NAME}.s")
    ap.add_argument("--depth", type=int, default=28)
    ap.add_argument("--stamps", action="store_true")
    ap.add_argument("-v", action="store_true")
    ap.add_argument("--padto", type=int, default=0)
    ap.add_argument("--nont", action="store_true")
    a = ap.parse_args()
    open(a.o, "w").write(Gen(depth=a.depth, stamps=a.stamps, verbose=a.v, padto=a.padto, nt=not a.nont).build())
```
